```python
import torch

def _softmax(x, axis=-1):
    return torch.softmax(x, dim=axis)
def _gelu(x):
    return torch.nn.functional.gelu(x, approximate="tanh")
def _silu(x):
    return torch.nn.functional.silu(x)
def _sigmoid(x):
    return torch.sigmoid(x)
def _layernorm(x, axis=-1, eps=1e-5):
    m = x.mean(dim=axis, keepdim=True)
    v = x.var(dim=axis, keepdim=True, unbiased=False)
    return (x - m) / torch.sqrt(v + eps)
def _scatter_add(tgt, idx, src, axis=0):
    return tgt.clone().index_add_(axis, idx, src)
def _segment_sum(src, seg, n):
    out = torch.zeros((n,) + src.shape[1:], dtype=src.dtype)
    return out.index_add_(0, seg, src)
def _pad(x, pw):
    flat = tuple(v for pair in reversed(pw) for v in pair)
    return torch.nn.functional.pad(x, flat)

kernel_name = 'gated_mix__linear_attn_block__dense_activation_relu__prompt'

def setup_inputs():

    _w = (lambda a: (lambda t: t.to(torch.bfloat16) if t.is_floating_point() else t)(torch.as_tensor(a)))
    def _A_setup():
        B, S, D = 1, 2048, 512
        return {
            "x": _w((lambda *s: torch.randn(*s, dtype=torch.bfloat16) * 0.05)(B, S, D)),
            "wqkv": _w((lambda *s: torch.randn(*s, dtype=torch.bfloat16) * 0.8)(D, 3 * D)),
            "wo": _w((lambda *s: torch.randn(*s, dtype=torch.bfloat16) * 0.2)(D, D)),
        }
    _A_in = _A_setup()

    def _B_setup():
        B, S, D, Dff = 1, 2048, 512, 1376
        return {
            "x": _w((lambda *s: torch.randn(*s, dtype=torch.bfloat16) * 0.05)(B, S, D)),
            "w1": _w((lambda *s: torch.randn(*s, dtype=torch.bfloat16) * 0.05)(D, Dff)),
            "w2": _w((lambda *s: torch.randn(*s, dtype=torch.bfloat16) * 0.05)(Dff, D)),
        }
    _B_in = _B_setup()

    return {
        "A_x": _A_in["x"],
        "A_wqkv": _A_in["wqkv"],
        "A_wo": _A_in["wo"],
        "B_x": _B_in["x"],
        "B_w1": _B_in["w1"],
        "B_w2": _B_in["w2"],
        "gate_w": _w((lambda *s: torch.randn(*s, dtype=torch.bfloat16) * 0.05)(512) * 16.0),
    }

def reference(A_x, A_wqkv, A_wo, B_x, B_w1, B_w2, gate_w):
    def _A_ref(x, wqkv, wo):
        B, S, D = x.shape
        H = 32; Dh = D // H
        qkv = (lambda x, *d: x.permute(*d))((x @ wqkv).reshape(B, S, 3, H, Dh), 2, 0, 3, 1, 4)
        q, k, v = qkv[0], qkv[1], qkv[2]
        phi = lambda t: torch.where(t > 0, t + 1, torch.exp(t)) + 1e-6
        pq, pk = phi(q), phi(k)
        kv = torch.einsum("bhsd,bhse->bhde", pk, v)
        z = torch.einsum("bhsd->bhd", pk)
        num = torch.einsum("bhqd,bhde->bhqe", pq, kv)
        den = torch.einsum("bhqd,bhd->bhq", pq, z)[..., None] + 1e-6
        o = num / den
        return (lambda x, *d: x.permute(*d))(o, 0, 2, 1, 3).reshape(B, S, D) @ wo

    def _B_ref(x, w1, w2):
        h = torch.einsum("bsd,df->bsf", x, w1)
        zero = torch.zeros_like(h)
        h = torch.maximum(h, zero)
        return torch.einsum("bsf,fd->bsd", h, w2)

    x = A_x
    g = _sigmoid((x * gate_w).sum(-1, keepdims=True))
    a = _A_ref(x, A_wqkv, A_wo)
    b = _B_ref(x, B_w1, B_w2)
    return g * a + (1 - g) * b
```

```python
KN = "gated_mix__linear_attn_block__dense_activation_relu__prompt"

HEADER = """; Kernarg layout for this problem (80 bytes, ptrs only, base s[0:1]):
"""

class K:
    def __init__(self, name, grid, block, lds, vgpr=256, agpr=0, sgpr=102):
        self.name, self.grid, self.block, self.lds = name, grid, block, lds
        self.vgpr, self.agpr, self.sgpr = vgpr, agpr, sgpr
        self.lines = []
        self._lab = 0
    def __call__(self, s):
        for l in s.strip("\n").split("\n"):
            l = l.strip()
            if not l: continue
            if l.endswith(":") or l.startswith("."):
                self.lines.append(l)
            else:
                self.lines.append("    " + l)
    def label(self, base="L"):
        self._lab += 1
        return f"{base}_{self.name[:6]}_{self._lab}"
    def text(self):
        return (getattr(self, "pre", "") + f".globl {self.name}\n.p2align 8\n.type {self.name},@function\n{self.name}:\n" + "\n".join(self.lines) + "\n")
    def desc(self):
        acc = (self.vgpr + 3) // 4 * 4
        nfv = acc + self.agpr if self.agpr else self.vgpr
        return f""".amdhsa_kernel {self.name}
  .amdhsa_next_free_vgpr {nfv}
  .amdhsa_next_free_sgpr {self.sgpr}
  .amdhsa_accum_offset {acc}
  .amdhsa_group_segment_fixed_size 0
  .amdhsa_kernarg_size 80
  .amdhsa_user_sgpr_count 2
  .amdhsa_user_sgpr_kernarg_segment_ptr 1
  .amdhsa_system_sgpr_workgroup_id_x 1
.end_amdhsa_kernel
"""

def emit(path, kernels, launches=None):
    launches = launches or kernels
    s = HEADER
    if len(launches) == 1 and launches[0].name == KN + "_kernel":
        k = launches[0]
        s += f"; @launch grid=({k.grid},1,1) block=({k.block},1,1) lds={k.lds}\n"
    else:
        for k in launches:
            s += f"; @launch kernel={k.name} grid=({k.grid},1,1) block=({k.block},1,1) lds={k.lds}\n"
    s += '.amdgcn_target "amdgcn-amd-amdhsa--gfx950"\n.text\n'
    for k in kernels:
        s += k.text()
    s += '.section .rodata,"a"\n'
    for k in kernels:
        s += ".p2align 6\n" + k.desc()
    open(path, "w").write(s)
```

```python
import re
REG = re.compile(r'^(-|abs\()?([vsa])(\d+)\)?$|^(-|abs\()?([vsa])\[(\d+):(\d+)\]\)?$')
TRANS = ("v_exp_", "v_log_", "v_rcp_", "v_rsq_", "v_sqrt_", "v_sin_", "v_cos_")

def regs(op):
    op = op.strip()
    if op in ("vcc", "vcc_lo", "vcc_hi"): return {("s", "vcc")}
    if op in ("exec", "exec_lo", "exec_hi"): return {("s", "exec")}
    if op == "m0": return {("s", "m0")}
    m = REG.match(op)
    if not m: return set()
    if m.group(2): return {(m.group(2), int(m.group(3)))}
    return {(m.group(5), i) for i in range(int(m.group(6)), int(m.group(7)) + 1)}

class I:
    def __init__(self, line):
        self.line = line
        t = line.split(";")[0].strip()
        self.is_ins = bool(t) and not t.endswith(":") and not t.startswith(".")
        self.w = set(); self.r = set(); self.kind = None; self.ws = 0
        if not self.is_ins: return
        t = re.sub(r"\s(op_sel|op_sel_hi|neg_lo|neg_hi|quad_perm):\[[^\]]*\]", "", t)
        parts = t.split(None, 1)
        mn = self.mn = parts[0]
        ops = []
        if len(parts) > 1:
            ops = [o.strip() for o in parts[1].split(",")]
            ops[-1:] = ops[-1].split()
        self.ops = ops
        R = [regs(o) for o in ops]
        U = lambda l: set().union(*l) if l else set()
        self.ws = 1
        if mn == "s_nop":
            self.kind = "nop"; self.ws = int(ops[0], 0) + 1
        elif mn.startswith("v_mfma"):
            self.kind = "mfma"; self.w = R[0]; self.ab = R[1] | R[2]; self.c = R[3]; self.r = self.ab | self.c
            self.passes = 8 if "32x32x16" in mn else 4
            assert "32x32x16" in mn or "16x16x32" in mn
        elif mn.startswith("v_"):
            self.kind = "valu"
            self.trans = mn.startswith(TRANS)
            self.w = set(R[0]); self.r = U(R[1:])
            if mn.startswith(("v_add_co", "v_sub_co", "v_addc_co", "v_subb_co")):
                self.w |= R[1]; self.r = U(R[2:])
            if mn.startswith(("v_fmac", "v_dot2c", "v_writelane", "v_pk_fmac")): self.r |= R[0]
            if mn.startswith("v_permlane"):
                self.w = R[0] | R[1]; self.r = R[0] | R[1]
            if mn.startswith("v_cmpx"): self.w |= {("s", "exec")}
            self.dpp = "dpp" in mn or "row_" in t or "quad_perm" in line
        elif mn.startswith("ds_"):
            self.kind = "ds"
            if mn.startswith(("ds_read", "ds_bpermute", "ds_permute", "ds_swizzle")): self.w = R[0]; self.r = U(R[1:])
            else: self.r = U(R)
        elif mn.startswith(("buffer_", "global_")):
            self.kind = "vmem"
            self.lds = ("lds" in ops) or ("_lds_" in mn)
            isload = "_load" in mn and not self.lds
            ret_atomic = "atomic" in mn and "sc0" in ops
            if isload: self.w = R[0]; self.r = U(R[1:])
            elif ret_atomic:
                self.w = R[0]; self.r = U(R) if mn.startswith("buffer") else U(R[1:])
            else: self.r = U(R)
            self.widestore = "_store" in mn and ("x4" in mn or "x3" in mn)
            if self.widestore:
                self.data = R[0] if mn.startswith("buffer") else R[1]
        elif mn.startswith("s_"):
            self.kind = "salu"
            if mn.startswith(("s_cmp", "s_cbranch", "s_branch", "s_waitcnt", "s_barrier", "s_endpgm", "s_sleep", "s_setprio", "s_bitcmp")):
                self.r = U(R)
            else:
                self.w = set(R[0]) if R else set(); self.r = U(R[1:])
                if "saveexec" in mn: self.w |= {("s", "exec")}
        else:
            raise ValueError(line)

def vg(s): return {x for x in s if x[0] in "va"}
def sg(s): return {x for x in s if x[0] == "s"}

def need(p, c):
    n = 0
    if p.kind == "mfma":
        big = {8: 12, 4: 8}[p.passes]
        if c.kind == "mfma":
            if p.w & c.ab: n = max(n, big)
            if p.w & c.c and p.w != c.c: n = max(n, big - 2)
            if p.w & c.c and p.w == c.c and p.passes != c.passes: n = max(n, big - 2)
            if p.w & c.w and not (p.w & c.c): n = max(n, big)
        elif c.kind in ("valu", "vmem", "ds"):
            if p.w & (c.r | c.w): n = max(n, big)
            if c.kind == "valu" and p.c & c.w: n = max(n, {8: 7, 4: 3}[p.passes])
            if c.kind in ("vmem", "ds") and p.c & c.w: n = max(n, {8: 7, 4: 3}[p.passes])
    elif p.kind == "valu":
        if c.kind == "mfma":
            if vg(p.w) & c.r: n = max(n, 2)
            if ("s", "exec") in p.w: n = max(n, 4)
        elif c.kind == "valu":
            if sg(p.w) & c.r:
                n = max(n, 4 if c.mn.startswith(("v_readlane", "v_writelane")) else 2)
            if p.trans and not c.trans and vg(p.w) & c.r: n = max(n, 1)
            if c.mn.startswith("v_permlane") and vg(p.w) & c.r: n = max(n, 2)
            if c.mn.startswith(("v_readlane", "v_readfirstlane")) and vg(p.w) & c.r: n = max(n, 1)
            if c.dpp and vg(p.w) & c.r: n = max(n, 2)
            if ("s", "exec") in p.w and (c.dpp or c.mn.startswith(("v_readlane", "v_readfirstlane", "v_writelane", "v_permlane"))): n = max(n, 5)
            if (("op_sel" in p.line and not p.mn.startswith("v_pk_")) or "sdwa" in p.line) and vg(p.w) & (c.r | c.w): n = max(n, 1)
        elif c.kind == "vmem":
            if sg(p.w) & c.r: n = max(n, 5)
        elif c.kind == "salu":
            if sg(p.w) & c.r: n = max(n, 1)
    elif p.kind == "salu":
        if ("s", "m0") in p.w and c.kind == "vmem" and c.lds: n = max(n, 1)
    elif p.kind == "vmem":
        if getattr(p, "widestore", False) and p.data & c.w:
            n = max(n, 2 if c.kind == "valu" else 1)
    return n

def pad(lines):
    out = []; hist = []
    added = 0
    for ln in lines:
        ins = I(ln)
        if not ins.is_ins:
            out.append(ln); continue
        dist = 0; req = 0
        for p in reversed(hist):
            r = need(p, ins) - dist
            if r > req: req = r
            dist += p.ws
            if dist >= 20: break
        while req > 0:
            n = min(req, 16)
            nop = I(f"    s_nop {n-1}")
            out.append(nop.line); hist.append(nop); req -= n; added += 1
        out.append(ln); hist.append(ins)
        if ins.mn in ("s_endpgm", "s_branch"): hist = []
        hist = hist[-24:]
    return out, added
```

```python
import sys
from asmlib import *
import hazard

WS_EPOCH = 0
WS_FLAGA = 4096
WS_FLAGK = 16384
WS_G     = 24576
WS_KVP   = 65536
KVP_STRIDE = 5120
WS_A2    = 1 << 20
A2_TG    = 120 * 1024
WS_USED  = WS_A2 + 64 * A2_TG
WS_STAMP = 16 << 20

SLOT = 16384
NSLOT = 9
MISC = NSLOT * SLOT
M_ZST = MISC
M_KVF = MISC + 1024
M_ZF  = MISC + 3072
M_GW  = MISC
LDS_BYTES = MISC + 4096

sX, sW1, sW2, sWO, sWS, sOUT, sGW = 8, 12, 16, 20, 24, 28, 32
pX, pWQ, pWO, pW1, pW2, pGW, pOUT, pDBG, pWS = 36, 38, 40, 44, 46, 48, 50, 52, 54
sWAVE, sRB, sROLE, sJJ, sTB, sCB, sROT, sROT2, sTAG, sBUD = 56, 57, 58, 59, 60, 61, 62, 63, 64, 65
sLW, sT0, sT1, sT2, sFLG, sFB0, sFB1, sW01 = 66, 67, 68, 69, 70, 72, 73, 71
sMASK16 = 74
sEXS = 76
sKF = 80
sST = 96

def srd(b): return f"s[{b}:{b+3}]"
def vr(b, n=4): return f"v[{b}:{b+n-1}]"

class Cfg:
    L = 4
    NB = 6
    G = 13
    pub_hA = (9, 8)
    pub_kv = (9, 0)
    firstA2 = 10
    nW2pre = 5
    stamps = False
    rot = True
    rot2 = True
    prio = True

class Gen:
    def __init__(self, cfg):
        self.c = cfg
        self.k = K(KN + "_kernel", 256, 512, LDS_BYTES, vgpr=256, sgpr=102)
        self.nstamp = 0

    def stamp(self, idx, vreg):
        if not self.c.stamps: return
        k = self.k
        k(f"s_memrealtime s[{sST}:{sST+1}]\ns_waitcnt lgkmcnt(0)\nv_writelane_b32 v{vreg}, s{sST}, {idx}")
    def stamp_flush(self, vreg, vtmp, lane):
        if not self.c.stamps: return
        k = self.k
        k(f"""
        s_lshl_b32 s{sT0}, s2, 3
        s_add_u32 s{sT0}, s{sT0}, s{sWAVE}
        s_lshl_b32 s{sT0}, s{sT0}, 8
        s_add_u32 s{sT0}, s{sT0}, {WS_STAMP}
        v_lshlrev_b32 v{vtmp}, 2, v{lane}
        v_add_u32 v{vtmp}, s{sT0}, v{vtmp}
        global_store_dword v{vtmp}, v{vreg}, s[{pWS}:{pWS+1}]
        """)

    def schedule(self, role):
        c = self.c
        bars = list(range(27))
        if role == 0: bars.insert(9, "8x")
        pos = {b: i for i, b in enumerate(bars)}
        order = []
        for t in range(8): order += [("A", t), ("W", t)]
        order += [("W", t) for t in range(8, 12)]
        order += [("W", t) for t in range(12, 12 + c.nW2pre)]
        a, w = 12, 12 + c.nW2pre
        while a < 27 or w < 27:
            if a < 27: order.append(("A", a)); a += 1
            if a < w - 1 and a < 27: order.append(("A", a)); a += 1
            if w < 27 and w <= a + 2: order.append(("W", w)); w += 1
        def freebar(it):
            kind, t = it
            if kind == "A" or t >= 11: return t + 1
            return t + 2
        def minint(it):
            kind, t = it
            if kind == "W" or t < 8: return -1
            if t < 20: return c.firstA2
            if t < 23: return c.pub_hB
            return c.pub_o
        free = list(range(NSLOT))
        rel = {}
        slot = {}
        sched = []
        qi = 0
        for i in range(len(bars) + 1):
            cur = bars[i - 1] if i > 0 else -1
            if i > 0:
                free += rel.pop(cur, [])
            curt = 8.5 if cur == "8x" else cur
            if role == 0 and cur == 8:
                slot["S"] = free.pop(0); rel.setdefault(9, []).append(slot["S"])
            cap = 6 if i == 0 else c.cap.get((role, cur), 2)
            items = []
            while qi < len(order) and free and len(items) < cap and minint(order[qi]) <= curt:
                it = order[qi]; qi += 1
                slot[it] = free.pop(0)
                rel.setdefault(freebar(it), []).append(slot[it])
                items.append(it)
            sched.append(items)
        assert qi == len(order), (role, order[qi:])
        for i, items in enumerate(sched):
            for (kind, t) in items:
                assert i <= pos[t], (role, kind, t, i)
        return bars, sched, slot

    def prologue(self):
        k = self.k; c = self.c
        if c.stamps: k(f"s_memrealtime s[{sST}:{sST+1}]")
        k(f"""
        s_cmp_ge_u32 s2, 256
        s_cbranch_scc1 L_end
        s_load_dwordx16 s[36:51], s[0:1], 0
        s_load_dwordx4 s[52:55], s[0:1], 64
        v_lshrrev_b32 v1, 6, v0
        s_and_b32 s{sT0}, s2, 7
        v_readfirstlane_b32 s{sWAVE}, v1
        v_and_b32 v1, 63, v0
        s_lshr_b32 s{sT1}, s2, 3
        s_lshr_b32 s{sRB}, s{sT0}, 2
        s_lshl_b32 s{sRB}, s{sRB}, 3
        s_lshr_b32 s{sT2}, s{sT1}, 2
        s_add_u32 s{sRB}, s{sRB}, s{sT2}
        s_bfe_u32 s{sROLE}, s{sT1}, 0x10001
        s_and_b32 s{sJJ}, s{sT0}, 3
        s_lshl_b32 s{sJJ}, s{sJJ}, 1
        s_and_b32 s{sCB}, s{sT1}, 1
        s_add_u32 s{sJJ}, s{sJJ}, s{sCB}
        s_and_b32 s{sROT}, s{sT1}, 3
        s_lshl_b32 s{sROT}, s{sROT}, 1
        s_xor_b32 s{sROT}, s{sROT}, s{sT2}
        s_lshr_b32 s{sT2}, s{sT1}, 3
        s_lshl_b32 s{sTB}, s{sT0}, 2
        s_add_u32 s{sTB}, s{sTB}, s{sT2}
        s_and_b32 s{sCB}, s{sT1}, 7
        s_lshl_b32 s{sROT2}, s{sT2}, 1
        s_xor_b32 s{sROT2}, s{sROT2}, s{sCB}
        s_mov_b32 s{sBUD}, 0x8000
        """)
        if not c.rot: k(f"s_mov_b32 s{sROT}, 0")
        if not c.rot2: k(f"s_mov_b32 s{sROT2}, 0")
        k(f"""
        s_cmp_lt_u32 s{sWAVE}, 4
        s_cbranch_scc1 L_consumer
        s_cmp_eq_u32 s{sROLE}, 0
        s_cbranch_scc1 L_load0
        s_branch L_load1
        """)

    def mk_srd(self, b, p, nbytes):
        self.k(f"s_mov_b32 s{b}, s{p}\ns_mov_b32 s{b+1}, s{p+1}\ns_mov_b32 s{b+2}, {nbytes}\ns_mov_b32 s{b+3}, 0x20000")

    def tag_from_epoch(self):
        self.k(f"s_mul_i32 s{sTAG}, s{sTAG}, 1664525\ns_add_u32 s{sTAG}, s{sTAG}, 1013904223")

    def loader(self, role):
        k = self.k; c = self.c
        pitch = 3072 if role == 0 else 2752
        vX, vWA, vWB, vW2, vA2, vT = 4, 8, 12, 16, 20, 21
        vST = 3
        k(f"L_load{role}:")
        if c.stamps: k(f"v_mov_b32 v{vST}, 0")
        k(f"""
        s_sub_u32 s{sT2}, s{sWAVE}, 4          ; w
        s_lshl_b32 s{sLW}, s{sT2}, 12
        s_and_b32 s{sW01}, s{sT2}, 1
        ; ---- x voffsets
        v_lshrrev_b32 v{vT}, 3, v1             ; l>>3
        v_lshrrev_b32 v{vT+1}, 4, v1           ; l>>4
        v_and_b32 v{vT+2}, 7, v1
        v_xor_b32 v{vT+2}, v{vT+2}, v{vT+1}
        v_lshlrev_b32 v{vT+2}, 4, v{vT+2}
        v_lshl_add_u32 v{vT+2}, v{vT}, 10, v{vT+2}
        s_lshl_b32 s{sT0}, s{sRB}, 17
        s_lshl_b32 s{sT1}, s{sT2}, 15
        s_add_u32 s{sT0}, s{sT0}, s{sT1}
        v_add_u32 v{vX}, s{sT0}, v{vT+2}
        v_xor_b32 v{vX+1}, 64, v{vX}
        v_add_u32 v{vX+2}, {2*7168}, v{vX}
        v_add_u32 v{vX+3}, {3*7168}, v{vX+1}
        v_add_u32 v{vX+1}, {7168}, v{vX+1}
        v_bfe_u32 v{vT+2}, v1, 2, 2
        v_xor_b32 v{vT+2}, v{vT+2}, v{vT+1}
        v_and_b32 v{vT+3}, 1, v{vT+2}
        v_lshlrev_b32 v{vT+3}, 6, v{vT+3}
        v_and_b32 v{vT}, 3, v1
        v_lshl_add_u32 v{vT+3}, v{vT}, 4, v{vT+3}
        v_lshrrev_b32 v{vT+2}, 1, v{vT+2}      ; half
        s_lshl_b32 s{sT0}, s{sT2}, 4
        v_add_u32 v{vT+1}, s{sT0}, v{vT+1}     ; R (i=0)
        v_mul_u32_u24 v{vT+4}, {pitch}, v{vT+1}
        v_add_u32 v{vT+4}, v{vT+4}, v{vT+3}
        """)
        if role == 0:
            k(f"""
            s_lshl_b32 s{sT0}, s{sJJ}, 7
            s_add_u32 s{sT1}, s{sT0}, 1024
            v_lshl_add_u32 v{vWA}, v{vT+2}, 10, v{vT+4}
            v_add_u32 v{vWA}, s{sT1}, v{vWA}
            """)
        else:
            k(f"""
            s_lshl_b32 s{sT1}, s{sJJ}, 8
            v_lshl_add_u32 v{vWA}, v{vT+2}, 7, v{vT+4}
            v_add_u32 v{vWA}, s{sT1}, v{vWA}
            s_lshl_b32 s{sT0}, s{sJJ}, 7
            s_add_u32 s{sT0}, s{sT0}, 2048
            """)
        for i in (1, 2, 3): k(f"v_add_u32 v{vWA+i}, {i*(4*pitch-1024)}, v{vWA}")
        k("s_waitcnt lgkmcnt(0)")
        if c.stamps: k(f"v_writelane_b32 v{vST}, s{sST}, 0")
        self.mk_srd(sX, pX, 2048*1024)
        self.mk_srd(sW1, pWQ if role == 0 else pW1, 512*pitch)
        bars, sched, slot = self.schedule(role)
        vm = []
        def issue(it):
            kind, t = it
            s = t - 12
            if kind == "A" and t < 8:
                k(f"s_xor_b32 s{sT1}, s{sROT}, {t}\ns_lshl_b32 s{sT1}, s{sT1}, 7"); v, r, aux = vX, sX, ""
            elif kind == "W" and t < 8:
                k(f"s_xor_b32 s{sT1}, s{sROT}, {t}\ns_mul_i32 s{sT1}, s{sT1}, {64*pitch}"); v, r, aux = vWA, sW1, ""
            elif kind == "W" and t < 12:
                k(f"s_lshr_b32 s{sT1}, s{sROT}, 1\ns_xor_b32 s{sT1}, s{sT1}, {t-8}\ns_mul_i32 s{sT1}, s{sT1}, {128*pitch}"); v, r, aux = vWB, sW1, ""
            elif kind == "W":
                if s < 8: k(f"s_xor_b32 s{sT1}, s{sROT2}, {s}\ns_lshl_b32 s{sT1}, s{sT1}, 17")
                else: k(f"s_mov_b32 s{sT1}, {(s if s < 11 else s-11) << 17}")
                v, r, aux = vW2, (sW2 if s < 11 else sWO), ""
            else:
                self.flag_wait()
                nxt = [x for x in flagq if x[1] > t]
                if nxt: self.flag_prefetch(nxt[0])
                if s == 11:
                    pass
                if s < 8: k(f"s_xor_b32 s{sT1}, s{sROT2}, {s}\ns_lshl_b32 s{sT1}, s{sT1}, 13")
                else: k(f"s_mov_b32 s{sT1}, {s << 13}")
                v, r, aux = vA2, sWS, "sc1"
            k(f"s_add_u32 m0, s{sLW}, {slot[it]*SLOT}")
            for i in range(4):
                vv = v if v == vA2 else v + i
                k(f"buffer_load_dwordx4 v{vv}, {srd(r)}, s{sT1} offen offset:{i*1024} {aux} lds")
                vm.append(it)
        flagq = [("A", t) for t in range(12, 27)]
        for i, items in enumerate(sched):
            cur = bars[i-1] if i > 0 else -1
            if i == 0:
                for it in items[:2]: issue(it)
                k(f"s_load_dword s{sTAG}, s[{pWS}:{pWS+1}], {WS_EPOCH}")
                k(f"""
                s_and_b32 s{sT1}, s{sROT}, 1
                v_xor_b32 v{vT+5}, s{sT1}, v{vT+2}
                v_mul_u32_u24 v{vT+5}, {64*pitch}, v{vT+5}
                v_add3_u32 v{vWB}, v{vT+5}, v{vT+4}, s{sT0}
                """)
                if role == 1:
                    k(f"""
                    v_add_u32 v{vT+5}, s{sT0}, v{vT+3}
                    v_cmp_le_u32 vcc, 2752, v{vT+5}
                    v_mov_b32 v{vT+5}, 0x80000000
                    v_cndmask_b32 v{vWB}, v{vWB}, v{vT+5}, vcc
                    """)
                for j in (1, 2, 3): k(f"v_add_u32 v{vWB+j}, {j*(4*pitch-1024)}, v{vWB}")
                for it in items[2:]: issue(it)
                k(f"""
                v_lshl_add_u32 v{vW2}, v{vT+1}, 10, v{vT+3}
                v_lshl_add_u32 v{vW2}, v{vT+2}, 16, v{vW2}
                s_lshl_b32 s{sT0}, s{sCB}, 7
                v_add_u32 v{vW2}, s{sT0}, v{vW2}
                """)
                for j in (1, 2, 3): k(f"v_add_u32 v{vW2+j}, {j*(4096-1024)}, v{vW2}")
                k(f"""
                s_lshr_b32 s{sT0}, s{sT2}, 1
                s_lshl_b32 s{sT1}, s{sTB}, 1
                s_add_u32 s{sT0}, s{sT0}, s{sT1}       ; tg
                s_lshl_b32 s{sT1}, s{sT0}, 7
                s_add_u32 s{sT1}, s{sT1}, {WS_FLAGA}
                s_add_u32 s{sFB0}, s{pWS}, s{sT1}
                s_addc_u32 s{sFB1}, s{pWS+1}, 0
                s_mul_i32 s{sT0}, s{sT0}, {A2_TG}
                s_lshl_b32 s{sT1}, s{sW01}, 12
                s_add_u32 s{sT0}, s{sT0}, s{sT1}
                s_add_u32 s{sT0}, s{sT0}, {WS_A2}
                v_lshlrev_b32 v{vA2}, 4, v1
                v_add_u32 v{vA2}, s{sT0}, v{vA2}
                """)
                self.mk_srd(sW2, pW2, 1376*1024)
                self.mk_srd(sWO, pWO, 512*1024)
                self.mk_srd(sWS, pWS, WS_USED)
                if role == 1:
                    self.mk_srd(sGW, pGW, 1024)
                    k(f"""
                    s_lshl_b32 s{sT0}, s{sROT}, 3
                    v_xor_b32 v{vT+5}, s{sT0}, v1
                    v_lshlrev_b32 v{vT+5}, 4, v{vT+5}
                    s_mov_b32 m0, {M_GW}
                    buffer_load_dwordx4 v{vT+5}, {srd(sGW)}, 0 offen lds
                    """)
                    vm.append(("W", 8))
                k("s_waitcnt lgkmcnt(0)")
                self.tag_from_epoch()
            else:
                if cur == c.firstA2 - 1 or (c.firstA2 == 9 and role == 0 and cur == "8x"):
                    self.flag_prefetch(flagq[0])
                gathered = False
                if role == 0 and cur == c.G:
                    self.kv_gather_issue(vm)
                    gathered = True
                for it in items: issue(it)
                if gathered: self.kv_gather_finish(vm)
                if cur == 22:
                    self.flag_wait_now(14)
            if i < len(bars):
                nb = bars[i]
                if nb != "8x":
                    last = max([j for j, x in enumerate(vm) if x != "X" and x[1] == nb], default=-1)
                    if last >= 0:
                        k(f"s_waitcnt vmcnt({len(vm) - 1 - last})")
                k("s_barrier")
                self.stamp(1 + i, vST)
        self.stamp_flush(vST, vT, 1)
        k("s_endpgm")
        self.sched_info = getattr(self, "sched_info", {})
        self.sched_info[role] = (bars, sched, slot)

    def flag_off(self, it, dst):
        k = self.k
        s = it[1] - 12
        if s < 8: k(f"s_xor_b32 s{dst}, s{sROT2}, {s}\ns_lshl_b32 s{dst}, s{dst}, 2")
        else:
            base = 8 + 2*(s-8) if s < 11 else 16 + 2*(s-11)
            k(f"s_add_u32 s{dst}, s{sW01}, {base}\ns_lshl_b32 s{dst}, s{dst}, 2")
    def flag_prefetch(self, it):
        self.flag_off(it, sEXS)
        self.k(f"s_load_dword s{sFLG}, s[{sFB0}:{sFB1}], s{sEXS} glc")
    def flag_wait(self):
        k = self.k
        l0, l1 = k.label("FW"), k.label("FD")
        k(f"""
        {l0}:
        s_waitcnt lgkmcnt(0)
        s_cmp_eq_u32 s{sFLG}, s{sTAG}
        s_cbranch_scc1 {l1}
        s_load_dword s{sFLG}, s[{sFB0}:{sFB1}], s{sEXS} glc
        s_sub_u32 s{sBUD}, s{sBUD}, 1
        s_cbranch_scc0 {l0}
        s_mov_b32 s{sBUD}, 0
        s_waitcnt lgkmcnt(0)
        {l1}:
        """)
    def flag_wait_now(self, idx):
        k = self.k
        l0, l1 = k.label("FW"), k.label("FD")
        k(f"""
        {l0}:
        s_load_dword s{sT0}, s[{sFB0}:{sFB1}], {idx*4} glc
        s_waitcnt lgkmcnt(0)
        s_cmp_eq_u32 s{sT0}, s{sTAG}
        s_cbranch_scc1 {l1}
        s_sub_u32 s{sBUD}, s{sBUD}, 1
        s_cbranch_scc0 {l0}
        s_mov_b32 s{sBUD}, 0
        {l1}:
        """)

    def kv_gather_issue(self, vm):
        k = self.k
        l0, l1 = k.label("KW"), k.label("KD")
        vK = 32
        k(f"""
        s_sub_u32 s{sT2}, s{sWAVE}, 4
        s_lshl_b32 s{sT0}, s{sJJ}, 2
        s_add_u32 s{sT0}, s{sT0}, s{sT2}
        s_lshl_b32 s{sT0}, s{sT0}, 7
        s_add_u32 s{sT0}, s{sT0}, {WS_FLAGK}
        {l0}:
        s_load_dwordx16 s[{sKF}:{sKF+15}], s[{pWS}:{pWS+1}], s{sT0} glc
        s_waitcnt lgkmcnt(0)
        s_xor_b32 s{sT1}, s{sKF}, s{sTAG}
        """)
        for i in range(1, 16):
            k(f"s_xor_b32 s{sKF+i}, s{sKF+i}, s{sTAG}\ns_or_b32 s{sT1}, s{sT1}, s{sKF+i}")
        k(f"""
        s_cbranch_scc0 {l1}
        s_sub_u32 s{sBUD}, s{sBUD}, 1
        s_cbranch_scc0 {l0}
        s_mov_b32 s{sBUD}, 0
        {l1}:
        s_mul_i32 s{sT0}, s{sJJ}, {16*KVP_STRIDE}
        s_add_u32 s{sT0}, s{sT0}, {WS_KVP}
        s_lshl_b32 s{sT1}, s{sT2}, 10
        v_lshlrev_b32 v28, 4, v1
        v_add_u32 v28, s{sT1}, v28
        v_lshlrev_b32 v29, 2, v1
        v_add_u32 v29, 4096, v29
        s_cmp_eq_u32 s{sT2}, 0
        s_cselect_b32 s{sT1}, 0, 0x80000000
        v_add_u32 v29, s{sT1}, v29
        """)
        for i in range(16):
            k(f"buffer_load_dwordx4 {vr(vK+4*i)}, v28, {srd(sWS)}, s{sT0} offen sc1")
            k(f"buffer_load_dword v{96+i}, v29, {srd(sWS)}, s{sT0} offen sc1")
            if i < 15: k(f"s_add_u32 s{sT0}, s{sT0}, {KVP_STRIDE}")
            vm.append("X"); vm.append("X")
        self.kv_last = len(vm) - 1
    def kv_gather_finish(self, vm):
        k = self.k
        vK = 32
        k(f"s_waitcnt vmcnt({len(vm) - 1 - self.kv_last})")
        st = 1
        while st < 16:
            for i in range(0, 16, 2*st):
                for e in range(4): k(f"v_add_f32 v{vK+4*i+e}, v{vK+4*i+e}, v{vK+4*(i+st)+e}")
                k(f"v_add_f32 v{96+i}, v{96+i}, v{96+i+st}")
            st *= 2
        l1 = k.label("KZ")
        k(f"""
        v_cvt_pk_bf16_f32 v{vK}, v{vK}, v{vK+1}
        v_cvt_pk_bf16_f32 v{vK+1}, v{vK+2}, v{vK+3}
        v_cvt_pk_bf16_f32 v96, v96, v96
        s_sub_u32 s{sT2}, s{sWAVE}, 4
        s_lshr_b32 s{sT0}, s{sT2}, 1
        s_lshl_b32 s{sT0}, s{sT0}, 10
        s_lshl_b32 s{sT1}, s{sW01}, 3
        s_add_u32 s{sT0}, s{sT0}, s{sT1}
        s_add_u32 s{sT0}, s{sT0}, {M_KVF}
        v_lshlrev_b32 v28, 4, v1
        v_add_u32 v28, s{sT0}, v28
        ds_write_b64 v28, v[{vK}:{vK+1}]
        s_cmp_lg_u32 s{sT2}, 0
        s_cbranch_scc1 {l1}
        v_lshrrev_b32 v28, 4, v1
        v_lshlrev_b32 v28, 5, v28
        v_bfe_u32 v29, v1, 2, 1
        v_lshl_add_u32 v28, v29, 4, v28
        v_bfe_u32 v29, v1, 3, 1
        v_lshl_add_u32 v28, v29, 3, v28
        v_and_b32 v29, 3, v1
        v_lshl_add_u32 v28, v29, 1, v28
        v_add_u32 v28, {M_ZF}, v28
        ds_write_b16 v28, v96
        {l1}:
        s_waitcnt lgkmcnt(0)
        """)

    def consumer_common(self):
        k = self.k; c = self.c
        k("L_consumer:")
        if c.prio: k("s_setprio 2")
        if c.stamps: k("v_mov_b32 v39, 0")
        k(f"""
        ; x read addresses v2..v5 : wave*4096 + t*128 + ((2ks+kh) ^ ((t>>1)&7))*16
        v_and_b32 v10, 31, v1                  ; t
        v_lshrrev_b32 v11, 5, v1               ; kh
        v_bfe_u32 v2, v1, 1, 3
        v_xor_b32 v2, v2, v11
        v_lshlrev_b32 v2, 4, v2
        v_lshl_add_u32 v2, v10, 7, v2
        s_lshl_b32 s{sT0}, s{sWAVE}, 12
        v_add_u32 v2, s{sT0}, v2
        v_xor_b32 v3, 32, v2
        v_xor_b32 v4, 64, v2
        v_xor_b32 v5, 96, v2
        v_bfe_u32 v36, v1, 2, 2                ; r
        v_and_b32 v37, 3, v1
        v_lshlrev_b32 v37, 3, v37
        v_bfe_u32 v38, v1, 4, 1
        v_lshl_add_u32 v37, v38, 5, v37
        v_mul_u32_u24 v38, 320, v36            ; r*256 + r*64
        v_add_u32 v37, v37, v38
        v_lshl_add_u32 v6, v11, 11, v37
        v_xor_b32 v7, 64, v6
        v_xor_b32 v8, 128, v6
        v_xor_b32 v9, 192, v6
        s_and_b32 s{sT0}, s{sWAVE}, 1
        s_lshl_b32 s{sT0}, s{sT0}, 6
        v_lshl_add_u32 v37, v11, 10, v37
        v_xor_b32 v37, s{sT0}, v37
        s_lshl_b32 s{sT0}, s{sRB}, 2
        s_add_u32 s{sT0}, s{sT0}, s{sWAVE}     ; tg
        s_lshl_b32 s{sFLG}, s{sT0}, 7          ; tg*128
        s_mul_i32 s{sT0}, s{sT0}, {A2_TG}
        s_add_u32 s{sT0}, s{sT0}, {WS_A2}
        v_lshlrev_b32 v10, 4, v1
        v_add_u32 v10, s{sT0}, v10
        s_mov_b32 s{sMASK16}, 0xffff0000
        s_mov_b32 s{sMASK16+1}, 0xffff0000
        s_waitcnt lgkmcnt(0)
        s_load_dword s{sTAG}, s[{pWS}:{pWS+1}], {WS_EPOCH}
        """)
        if c.stamps: k(f"v_writelane_b32 v39, s{sST}, 0")
        self.mk_srd(sWS, pWS, WS_USED)
        self.mk_srd(sOUT, pOUT, 2048*1024)
        k("s_waitcnt lgkmcnt(0)")
        self.tag_from_epoch()
        k(f"""
        s_cmp_eq_u32 s{sROLE}, 0
        s_cbranch_scc0 L_cons1
        """)

    class DS:
        def __init__(self, k):
            self.k = k; self.n = 0; self.done = 0; self.base = {}
        def addr(self, v, a):
            b = self.base.get(v, 0)
            if not (0 <= a - b <= 65535):
                nb = a & ~0x3fff
                if nb + 65535 > LDS_BYTES + 16384: nb = min(nb, 98304)
                self.k(f"v_add_u32 v{v}, {(nb - b) & 0xffffffff}, v{v}")
                self.base[v] = b = nb
            return a - b
        def op(self, text):
            self.k(text); self.n += 1; return self.n
        def read128(self, dst, v, a):
            o = self.addr(v, a); return self.op(f"ds_read_b128 {vr(dst)}, v{v} offset:{o}")
        def tr(self, dst, v, a):
            o = self.addr(v, a); return self.op(f"ds_read_b64_tr_b16 v[{dst}:{dst+1}], v{v} offset:{o}")
        def wait(self, tok):
            if tok > self.done:
                assert self.n - tok <= 15
                self.k(f"s_waitcnt lgkmcnt({self.n - tok})"); self.done = tok
        def waitall(self): self.wait(self.n)

    def publish(self, flag_soff_expr, epoch_check=False):
        k = self.k
        k("s_waitcnt vmcnt(0)")
        k(flag_soff_expr)
        k(f"""
        v_mov_b32 v36, s{sTAG}
        v_mov_b32 v38, 0
        s_mov_b64 exec, 1
        buffer_store_dword v36, v38, {srd(sWS)}, s{sT0} offen sc1
        """)
        if epoch_check:
            k(f"""
            v_cmp_eq_u32 vcc, 255, v11
            s_and_b64 exec, exec, vcc
            buffer_store_dword v36, v38, {srd(sWS)}, 0 offen sc1
            """)
        k("s_mov_b64 exec, -1")

    def phi(self, src, dst):
        k = self.k
        k(f"s_mov_b32 s{sT1}, 0x3fb8aa3b\ns_mov_b32 s{sT2}, 0x358637bd")
        for r in range(0, 16, 2):
            k(f"""
            v_mul_f32 v36, s{sT1}, v{src+r}
            v_mul_f32 v38, s{sT1}, v{src+r+1}
            v_exp_f32_e64 v36, v36 clamp
            v_exp_f32_e64 v38, v38 clamp
            v_max_f32 v{src+r}, s{sT2}, v{src+r}
            v_max_f32 v{src+r+1}, s{sT2}, v{src+r+1}
            v_add_f32 v36, v36, v{src+r}
            v_add_f32 v38, v38, v{src+r+1}
            v_cvt_pk_bf16_f32 v{dst+r//2}, v36, v38
            """)

    def relu_store(self, src, kf_soff, off):
        k = self.k
        for r in range(0, 16, 2):
            k(f"v_cvt_pk_bf16_f32 v{src+r//2}, v{src+r}, v{src+r+1}")
        for r in range(8):
            k(f"v_pk_max_i16 v{src+r}, v{src+r}, 0")
        for f in range(2):
            k(f"buffer_store_dwordx4 {vr(src+4*f)}, v10, {srd(sWS)}, s{kf_soff} offen offset:{off+1024*f} sc1")

    def consumer(self, role):
        k = self.k; c = self.c
        bars, sched, slot = self.sched_info[role]
        ds = Gen.DS(k)
        vACC, vXF, vWB = 64, 128, 12
        if role == 1: k("L_cons1:")
        nbar = [0]
        def barrier(name):
            assert bars[nbar[0]] == name, (bars[nbar[0]], name)
            k("s_barrier"); nbar[0] += 1
            if c.stamps:
                self.stamp(nbar[0], 39); ds.done = ds.n
        M = []
        for t in range(8):
            for ks in range(4):
                for ct in range(4): M.append(dict(t=t, ks=ks, q=ct, xf=4*t+ks, acc=vACC+16*ct, first=(t == 0 and ks == 0), tr=(role == 1)))
        for u in range(4):
            for hf in range(2):
                for ks in range(4):
                    for ct in range(2): M.append(dict(t=8+u, ks=ks, q=2*hf+ct, xf=(2*u+hf)*4+ks, acc=vACC+16*ct, first=(u == 0 and hf == 0 and ks == 0), tr=True))
        xtok = {}
        seen = set()
        def reads(m):
            e = M[m]; t = e["t"]
            if t not in seen:
                seen.add(t); barrier(t)
                if t == 0:
                    l = k.label("AT")
                    k(f"""
                    v_mov_b32 v11, 0
                    s_cmp_lg_u32 s{sWAVE}, 0
                    s_cbranch_scc1 {l}
                    v_mov_b32 v36, 1
                    v_mov_b32 v38, 0
                    s_mov_b64 exec, 1
                    global_atomic_add v11, v38, v36, s[{pDBG}:{pDBG+1}] sc0 sc1
                    s_mov_b64 exec, -1
                    {l}:
                    """)
            if t < 8 and e["ks"] == 0:
                ks = e["q"]
                xtok[4*t+ks] = ds.read128(vXF + 4*(4*t+ks), 2+ks, slot[("A", t)]*SLOT)
            b = vWB + 4*(m % c.NB)
            a = slot[("W", t)]*SLOT + e["ks"]*4096
            ds.tr(b, 6+e["q"], a); e["tok"] = ds.tr(b+2, 6+e["q"], a + 1024)
        def mfma(m):
            e = M[m]
            ds.wait(max(e["tok"], xtok[e["xf"]]))
            b = vWB + 4*(m % c.NB); x = vXF + 4*e["xf"]
            A, B = (b, x) if e["tr"] else (x, b)
            k(f"v_mfma_f32_32x32x16_bf16 {vr(e['acc'],16)}, {vr(A)}, {vr(B)}, {'0' if e['first'] else vr(e['acc'],16)}")
        for m in range(c.L): reads(m)
        skipB = k.label("SKB"); joinB = k.label("JB")
        for m in range(len(M)):
            if m == 128:
                if role == 1:
                    k(f"s_lshl_b32 s{sT2}, s{sJJ}, 13\ns_add_u32 s{sT1}, s{sT2}, 4096")
                    for ct in range(4):
                        self.relu_store(vACC+16*ct, sT2 if ct < 2 else sT1, (ct & 1)*2048)
                    k(f"s_cmp_ge_u32 s{sJJ}, 6\ns_cbranch_scc1 {skipB}")
                    saved = (ds.n, ds.done, dict(ds.base), nbar[0])
                else:
                    self.epiA_qkv(ds, slot, barrier)
            if m + c.L < len(M): reads(m + c.L)
            mfma(m)
            e = M[m]
            pub = c.pub_hA if role == 1 else c.pub_kv
            if m == 128 + (pub[0]-8)*16 + pub[1]:
                if role == 1:
                    self.publish(f"s_lshl_b32 s{sT0}, s{sJJ}, 2\ns_add_u32 s{sT0}, s{sT0}, s{sFLG}\ns_add_u32 s{sT0}, s{sT0}, {WS_FLAGA}", True)
                else:
                    self.publish(f"""s_lshl_b32 s{sT0}, s{sJJ}, 2
                    s_add_u32 s{sT0}, s{sT0}, s{sWAVE}
                    s_lshl_b32 s{sT0}, s{sT0}, 5
                    s_add_u32 s{sT0}, s{sT0}, s{sRB}
                    s_lshl_b32 s{sT0}, s{sT0}, 2
                    s_add_u32 s{sT0}, s{sT0}, {WS_FLAGK}""", True)
        if role == 1:
            k(f"s_lshl_b32 s{sT2}, s{sJJ}, 12\ns_add_u32 s{sT2}, s{sT2}, {64*1024}")
            for ct in range(2): self.relu_store(vACC+16*ct, sT2, ct*2048)
            k(f"s_branch {joinB}")
            endstate = (ds.n, ds.done, dict(ds.base), nbar[0])
            k(f"{skipB}:")
            ds.n, ds.done, ds.base, nbar[0] = saved
            ds.waitall()
            noG = k.label("NG")
            k(f"s_cmp_lg_u32 s{sJJ}, 6\ns_cbranch_scc1 {noG}")
            k(f"v_lshrrev_b32 v36, 5, v1\nv_lshlrev_b32 v36, 4, v36\nv_add_u32 v36, {M_GW}, v36")
            toks = {}
            for f in range(32 + 4):
                if f < 32: toks[f] = ds.op(f"ds_read_b128 {vr(vWB+4*(f%6))}, v36 offset:{32*f}")
                if f >= 4:
                    g = f - 4
                    ds.wait(toks[g])
                    k(f"v_mfma_f32_32x32x16_bf16 {vr(vACC,16)}, {vr(vWB+4*(g%6))}, {vr(vXF+4*g)}, {'0' if g == 0 else vr(vACC,16)}")
            k(f"""
            v_mul_f32 v36, 0xbfb8aa3b, v{vACC}
            v_exp_f32 v36, v36
            v_add_f32 v36, 1.0, v36
            v_rcp_f32 v36, v36
            v_and_b32 v38, 31, v1
            v_lshlrev_b32 v38, 2, v38
            s_add_u32 s{sT0}, s{sFLG}, {WS_G}
            buffer_store_dword v36, v38, {srd(sWS)}, s{sT0} offen sc1
            {noG}:
            """)
            while bars[nbar[0]] != c.pub_hA[0] + 1: barrier(bars[nbar[0]])
            self.publish(f"s_lshl_b32 s{sT0}, s{sJJ}, 2\ns_add_u32 s{sT0}, s{sT0}, s{sFLG}\ns_add_u32 s{sT0}, s{sT0}, {WS_FLAGA}", True)
            while bars[nbar[0]] != 12: barrier(bars[nbar[0]])
            assert nbar[0] == endstate[3]
            k(f"{joinB}:\ns_nop 7")
            ds.n = ds.done = 0
        else:
            for ct in range(2): self.phi(vACC+16*ct, vACC+8*ct)
        k(f"""
        s_lshr_b32 s{sT0}, s{sWAVE}, 1
        s_lshl_b32 s{sT0}, s{sT0}, 13
        v_lshlrev_b32 v2, 4, v1
        v_add_u32 v2, s{sT0}, v2
        v_mov_b32 v3, v37
        v_xor_b32 v4, 128, v37
        """)
        ds.base = {}
        vB, vA = 96, 112
        fA, fW = 128, 160
        tok = {}
        def rd2(t, kf):
            a = slot[("A", t)]*SLOT + kf*1024
            w = slot[("W", t)]*SLOT + (kf & 3)*4096
            ds.read128(fA+4*kf, 2, a)
            ds.tr(fW+4*kf, 3+(kf >> 2), w); tok[(t, kf)] = ds.tr(fW+4*kf+2, 3+(kf >> 2), w + 2048)
        def mf2(t, kf):
            ds.wait(tok[(t, kf)])
            acc = vB if t < 23 else vA
            first = kf == 0 and t in (12, 23)
            k(f"v_mfma_f32_32x32x16_bf16 {vr(acc,16)}, {vr(fW+4*kf)}, {vr(fA+4*kf)}, {'0' if first else vr(acc,16)}")
        def extras(t):
            if role == 1 and t == c.pub_hB:
                self.publish(f"s_lshl_b32 s{sT0}, s{sJJ}, 2\ns_add_u32 s{sT0}, s{sT0}, s{sFLG}\ns_add_u32 s{sT0}, s{sT0}, {WS_FLAGA+32}")
            if role == 0 and t == c.G + 1: self.o_compute(ds)
            if role == 0 and t == c.pub_o:
                self.publish(f"s_lshl_b32 s{sT0}, s{sJJ}, 2\ns_add_u32 s{sT0}, s{sT0}, s{sFLG}\ns_add_u32 s{sT0}, s{sT0}, {WS_FLAGA+64}")
            if t == 23:
                k(f"""
                s_lshl_b32 s{sT0}, s{sTB}, 1
                s_lshr_b32 s{sT1}, s{sWAVE}, 1
                s_add_u32 s{sT0}, s{sT0}, s{sT1}
                s_lshl_b32 s{sT1}, s{sT0}, 7
                s_add_u32 s{sT1}, s{sT1}, {WS_G}
                v_and_b32 v5, 31, v1
                v_lshlrev_b32 v6, 2, v5
                buffer_load_dword v7, v6, {srd(sWS)}, s{sT1} offen sc1
                s_lshl_b32 s{sT0}, s{sT0}, 15
                s_lshl_b32 s{sT1}, s{sCB}, 7
                s_add_u32 s{sT0}, s{sT0}, s{sT1}
                s_and_b32 s{sT1}, s{sWAVE}, 1
                s_lshl_b32 s{sT1}, s{sT1}, 6
                s_add_u32 s{sT0}, s{sT0}, s{sT1}
                v_lshrrev_b32 v6, 5, v1
                v_lshlrev_b32 v6, 4, v6
                v_lshl_add_u32 v6, v5, 10, v6
                v_add_u32 v6, s{sT0}, v6
                """)
        ds.waitall()
        barrier(12)
        for kf in range(4): rd2(12, kf)
        extras(12)
        for t in range(12, 27):
            for kf in range(8):
                if kf == 5 and t < 26:
                    ds.waitall()
                    barrier(t+1)
                mf2(t, kf)
                if kf < 4: rd2(t, kf+4)
                elif kf >= 5 and t < 26:
                    rd2(t+1, kf-5)
                    if kf == 7:
                        rd2(t+1, 3)
                        extras(t+1)
        assert nbar[0] == len(bars)
        k("s_waitcnt vmcnt(0)")
        for r in range(16):
            k(f"v_sub_f32 v{vA+r}, v{vA+r}, v{vB+r}")
        for r in range(16):
            k(f"v_fma_f32 v{vA+r}, v{vA+r}, v7, v{vB+r}")
        for r in range(8):
            k(f"v_cvt_pk_bf16_f32 v{vB+r}, v{vA+2*r}, v{vA+2*r+1}")
        for p in range(2):
            k(f"v_permlane32_swap_b32 v{vB+4*p}, v{vB+4*p+2}\nv_permlane32_swap_b32 v{vB+4*p+1}, v{vB+4*p+3}")
        for p in range(2):
            k(f"buffer_store_dwordx4 {vr(vB+4*p)}, v6, {srd(sOUT)}, 0 offen offset:{32*p}")
        if c.stamps:
            k("s_waitcnt vmcnt(0)")
            self.stamp(40, 39)
            self.stamp_flush(39, 36, 1)
        k("s_endpgm")

    def epiA_qkv(self, ds, slot, barrier):
        k = self.k
        self.phi(64, 64)
        self.phi(80, 72)
        for ct in (2, 3):
            for r in range(0, 16, 2):
                k(f"v_cvt_pk_bf16_f32 v{64+8*ct+r//2}, v{64+16*ct+r}, v{64+16*ct+r+1}")
        k(f"""
        v_and_b32 v36, 4, v1
        v_cmp_eq_u32 vcc, 0, v36
        v_mov_b32 v36, 0x3f803f80
        v_cndmask_b32 v56, 0, v36, vcc
        v_xor_b32 v60, v56, v36
        """)
        for i in (1, 2, 3): k(f"v_mov_b32 v{56+i}, v56\nv_mov_b32 v{60+i}, v60")
        for T in range(2):
            for f in range(2):
                k(f"v_mfma_f32_32x32x16_bf16 {vr(96+16*T,16)}, {vr(64+8*T+4*f)}, {vr(80+8*T+4*f)}, {'0' if f == 0 else vr(96+16*T,16)}")
        for T in range(2):
            for f in range(2):
                k(f"v_mfma_f32_32x32x16_bf16 {vr(40,16)}, {vr(56+4*T)}, {vr(64+8*T+4*f)}, {'0' if (T == 0 and f == 0) else vr(40,16)}")
        S = slot["S"]*SLOT
        k(f"""
        s_lshl_b32 s{sT0}, s{sWAVE}, 12
        s_add_u32 s{sT0}, s{sT0}, {S}
        v_lshlrev_b32 v36, 4, v1
        v_add_u32 v38, s{sT0}, v36
        """)
        for T in range(2):
            for r in range(8):
                k(f"v_cndmask_b32 v{96+16*T+r}, v{96+16*T+r}, v{96+16*T+8+r}, s[{sMASK16}:{sMASK16+1}]")
            for q in range(2):
                ds.op(f"ds_write_b128 v38, {vr(96+16*T+4*q)} offset:{(2*T+q)*1024}")
        k(f"""
        s_lshl_b32 s{sT0}, s{sWAVE}, 8
        s_add_u32 s{sT0}, s{sT0}, {M_ZST}
        v_lshlrev_b32 v56, 2, v1
        v_add_u32 v57, s{sT0}, v56
        """)
        ds.op(f"ds_write_b32 v57, v40")
        k(f"""
        s_lshl_b32 s{sT0}, s{sWAVE}, 10
        s_add_u32 s{sT1}, s{sT0}, {S}
        v_add_u32 v38, s{sT1}, v36
        v_add_u32 v57, {M_ZST}, v56
        v_add_u32 v36, s{sT0}, v36
        """)
        ds.waitall()
        barrier("8x")
        for w in range(4): ds.op(f"ds_read_b128 {vr(96+4*w)}, v38 offset:{w*4096}")
        for w in range(4): ds.op(f"ds_read_b32 v{112+w}, v57 offset:{w*256}")
        k(f"""
        s_lshl_b32 s{sT0}, s{sJJ}, 4
        s_add_u32 s{sT0}, s{sT0}, s{sRB}
        s_mul_i32 s{sT0}, s{sT0}, {KVP_STRIDE}
        s_add_u32 s{sT0}, s{sT0}, {WS_KVP}
        s_cmp_eq_u32 s{sWAVE}, 0
        s_cselect_b32 s{sT1}, 0, 0x80000000
        s_add_u32 s{sT1}, s{sT1}, 4096
        v_add_u32 v56, s{sT1}, v56
        """)
        ds.waitall()
        for e in range(4):
            k(f"v_add_f32 v{96+e}, v{96+e}, v{100+e}\nv_add_f32 v{104+e}, v{104+e}, v{108+e}")
        k("v_add_f32 v112, v112, v113\nv_add_f32 v114, v114, v115")
        for e in range(4): k(f"v_add_f32 v{96+e}, v{96+e}, v{104+e}")
        k("v_add_f32 v112, v112, v114")
        k(f"buffer_store_dwordx4 {vr(96)}, v36, {srd(sWS)}, s{sT0} offen sc1")
        k(f"buffer_store_dword v112, v56, {srd(sWS)}, s{sT0} offen sc1")

    def o_compute(self, ds):
        k = self.k
        k(f"""
        v_lshlrev_b32 v36, 4, v1
        v_add_u32 v36, {M_KVF}, v36
        v_lshrrev_b32 v38, 5, v1
        v_lshlrev_b32 v38, 4, v38
        v_add_u32 v38, {M_ZF}, v38
        """)
        toks = []
        for T in range(2):
            for f in range(2):
                k(f"v_add_u32 v5, {1024*T}, v36\nv_add_u32 v6, {64*T+32*f}, v38")
                if f == 0: k(f"v_cndmask_b32 v5, v5, v6, s[{sMASK16}:{sMASK16+1}]")
                else: k(f"v_cndmask_b32 v5, v6, v5, s[{sMASK16}:{sMASK16+1}]")
                while ds.n - ds.done >= 15: ds.wait(ds.done + 1)
                toks.append(ds.op(f"ds_read_b128 {vr(12+4*(2*T+f))}, v5"))
        k(f"s_lshl_b32 s{sT0}, s{sJJ}, 12\ns_add_u32 s{sT0}, s{sT0}, {88*1024}\ns_mov_b32 s{sT1}, 0x358637bd")
        D = [80, 40, 192, 208]
        for h in range(4):
            ds.wait(toks[h])
            k(f"v_mfma_f32_32x32x16_bf16 {vr(D[h],16)}, {vr(12+4*h)}, {vr(64+4*h)}, 0")
        for h in range(4):
            f = h & 1
            num = D[h] + 8*f; den = D[h] + 8*(1-f)
            k(f"v_add_f32 v{den}, s{sT1}, v{den}\nv_rcp_f32 v{den}, v{den}")
            for r in range(8): k(f"v_mul_f32 v{num+r}, v{num+r}, v{den}")
            for r in range(4): k(f"v_cvt_pk_bf16_f32 v{num+r}, v{num+2*r}, v{num+2*r+1}")
            k(f"buffer_store_dwordx4 {vr(num)}, v10, {srd(sWS)}, s{sT0} offen offset:{1024*h} sc1")

    def build(self, path):
        self.prologue()
        self.loader(0); self.loader(1)
        self.consumer_common()
        self.consumer(0); self.consumer(1)
        self.k("L_end:\ns_endpgm")
        self.k.lines, n = hazard.pad(self.k.lines)
        emit(path, [self.k])
        return n

def make(path, **kw):
    c = Cfg()
    c.pub_hB = 14; c.pub_o = 16
    c.cap = {(0, 8): 3, (1, 8): 3, (0, 11): 3, (1, 11): 3}
    for a, b in kw.items(): setattr(c, a, b)
    g = Gen(c)
    n = g.build(path)
    return g, n

if __name__ == "__main__":
    g, n = make("k1.s")
    for role in (0, 1):
        bars, sched, slot = g.sched_info[role]
        print("role", role)
        for i, it in enumerate(sched):
            print("  after", bars[i-1] if i else "start", [f"{a}{t}@{slot[(a,t)]}" for a, t in it])
    print("nops added", n, "lines", len(g.k.lines))
    make("k1s.s", stamps=True)
```

```python
import sys
from asmlib import *
import hazard

WS_EPOCH = 0
WS_FLAGA = 4096
WS_FLAGK = 16384
WS_G     = 24576
WS_KVP   = 65536
KVP_STRIDE = 5120
WS_A2    = 1 << 20
A2_TG    = 120 * 1024
WS_USED  = WS_A2 + 64 * A2_TG
WS_STAMP = 16 << 20

SLOT = 16384
NSLOT = 9
MISC = NSLOT * SLOT
M_ZST = MISC
M_KVF = MISC + 1024
M_ZF  = MISC + 3072
M_GW  = MISC
LDS_BYTES = MISC + 4096

sX, sW1, sW2, sWO, sWS, sOUT, sGW = 8, 12, 16, 20, 24, 28, 32
pX, pWQ, pWO, pW1, pW2, pGW, pOUT, pDBG, pWS = 36, 38, 40, 44, 46, 48, 50, 52, 54
sWAVE, sRB, sROLE, sJJ, sTB, sCB, sROT, sROT2, sTAG, sBUD = 56, 57, 58, 59, 60, 61, 62, 63, 64, 65
sLW, sT0, sT1, sT2, sFLG, sFB0, sFB1, sW01 = 66, 67, 68, 69, 70, 72, 73, 71
sMASK16 = 74
sEXS = 76
sKF = 80
sST = 96

def srd(b): return f"s[{b}:{b+3}]"
def vr(b, n=4): return f"v[{b}:{b+n-1}]"

class Cfg:
    L = 4
    NB = 6
    G = 13
    pub_hA = (9, 8)
    pub_kv = (9, 0)
    firstA2 = 10
    nW2pre = 5
    stamps = False
    rot = True
    rot2 = True
    prio = True
    dbgtime = False

class Gen:
    def __init__(self, cfg):
        self.c = cfg
        self.k = K(KN + "_kernel", 256, 512, LDS_BYTES, vgpr=256, sgpr=102)
        self.nstamp = 0

    def stamp(self, idx, vreg):
        if not self.c.stamps: return
        k = self.k
        k(f"s_memrealtime s[{sST}:{sST+1}]\ns_waitcnt lgkmcnt(0)\nv_writelane_b32 v{vreg}, s{sST}, {idx}")
    def stamp_flush(self, vreg, vtmp, lane):
        if not self.c.stamps: return
        k = self.k
        k(f"""
        s_lshl_b32 s{sT0}, s2, 3
        s_add_u32 s{sT0}, s{sT0}, s{sWAVE}
        s_lshl_b32 s{sT0}, s{sT0}, 8
        s_add_u32 s{sT0}, s{sT0}, {WS_STAMP}
        v_lshlrev_b32 v{vtmp}, 2, v{lane}
        v_add_u32 v{vtmp}, s{sT0}, v{vtmp}
        global_store_dword v{vtmp}, v{vreg}, s[{pWS}:{pWS+1}]
        """)

    def schedule(self, role):
        c = self.c
        bars = list(range(27))
        if role == 0: bars.insert(9, "8x")
        pos = {b: i for i, b in enumerate(bars)}
        order = []
        for t in range(8): order += [("A", t), ("W", t)]
        order += [("W", t) for t in range(8, 12)]
        order += [("W", t) for t in range(12, 12 + c.nW2pre)]
        a, w = 12, 12 + c.nW2pre
        while a < 27 or w < 27:
            if a < 27: order.append(("A", a)); a += 1
            if a < w - 1 and a < 27: order.append(("A", a)); a += 1
            if w < 27 and w <= a + 2: order.append(("W", w)); w += 1
        def freebar(it):
            kind, t = it
            if kind == "A" or t >= 11: return t + 1
            return t + 2
        def minint(it):
            kind, t = it
            if kind == "W" or t < 8: return -1
            if t < 20: return c.firstA2
            if t < 23: return c.pub_hB
            return c.pub_o
        free = list(range(NSLOT))
        rel = {}
        slot = {}
        sched = []
        qi = 0
        for i in range(len(bars) + 1):
            cur = bars[i - 1] if i > 0 else -1
            if i > 0:
                free += rel.pop(cur, [])
            curt = 8.5 if cur == "8x" else cur
            if role == 0 and cur == 8:
                slot["S"] = free.pop(0); rel.setdefault(9, []).append(slot["S"])
            cap = 6 if i == 0 else c.cap.get((role, cur), 2)
            items = []
            while qi < len(order) and free and len(items) < cap and minint(order[qi]) <= curt:
                it = order[qi]; qi += 1
                slot[it] = free.pop(0)
                rel.setdefault(freebar(it), []).append(slot[it])
                items.append(it)
            sched.append(items)
        assert qi == len(order), (role, order[qi:])
        for i, items in enumerate(sched):
            for (kind, t) in items:
                assert i <= pos[t], (role, kind, t, i)
        return bars, sched, slot

    def prologue(self):
        k = self.k; c = self.c
        if c.stamps: k(f"s_memrealtime s[{sST}:{sST+1}]")
        if c.dbgtime: k(f"s_memrealtime s[96:97]\ns_memtime s[98:99]")
        k(f"""
        s_cmp_ge_u32 s2, 256
        s_cbranch_scc1 L_end
        s_load_dwordx16 s[36:51], s[0:1], 0
        s_load_dwordx4 s[52:55], s[0:1], 64
        v_lshrrev_b32 v1, 6, v0
        s_and_b32 s{sT0}, s2, 7
        v_readfirstlane_b32 s{sWAVE}, v1
        v_and_b32 v1, 63, v0
        s_lshr_b32 s{sT1}, s2, 3
        s_lshr_b32 s{sRB}, s{sT0}, 2
        s_lshl_b32 s{sRB}, s{sRB}, 3
        s_lshr_b32 s{sT2}, s{sT1}, 2
        s_add_u32 s{sRB}, s{sRB}, s{sT2}
        s_bfe_u32 s{sROLE}, s{sT1}, 0x10001
        s_and_b32 s{sJJ}, s{sT0}, 3
        s_lshl_b32 s{sJJ}, s{sJJ}, 1
        s_and_b32 s{sCB}, s{sT1}, 1
        s_add_u32 s{sJJ}, s{sJJ}, s{sCB}
        s_and_b32 s{sROT}, s{sT1}, 3
        s_lshl_b32 s{sROT}, s{sROT}, 1
        s_xor_b32 s{sROT}, s{sROT}, s{sT2}
        s_lshr_b32 s{sT2}, s{sT1}, 3
        s_lshl_b32 s{sTB}, s{sT0}, 2
        s_add_u32 s{sTB}, s{sTB}, s{sT2}
        s_and_b32 s{sCB}, s{sT1}, 7
        s_lshl_b32 s{sROT2}, s{sT2}, 1
        s_xor_b32 s{sROT2}, s{sROT2}, s{sCB}
        s_mov_b32 s{sBUD}, 0x8000
        """)
        if not c.rot: k(f"s_mov_b32 s{sROT}, 0")
        if not c.rot2: k(f"s_mov_b32 s{sROT2}, 0")
        k(f"""
        s_cmp_lt_u32 s{sWAVE}, 4
        s_cbranch_scc1 L_consumer
        s_cmp_eq_u32 s{sROLE}, 0
        s_cbranch_scc1 L_load0
        s_branch L_load1
        """)

    def mk_srd(self, b, p, nbytes):
        self.k(f"s_mov_b32 s{b}, s{p}\ns_mov_b32 s{b+1}, s{p+1}\ns_mov_b32 s{b+2}, {nbytes}\ns_mov_b32 s{b+3}, 0x20000")

    def tag_from_epoch(self):
        self.k(f"s_mul_i32 s{sTAG}, s{sTAG}, 1664525\ns_add_u32 s{sTAG}, s{sTAG}, 1013904223")

    def loader(self, role):
        k = self.k; c = self.c
        pitch = 3072 if role == 0 else 2752
        vX, vWA, vWB, vW2, vA2, vT = 4, 8, 12, 16, 20, 21
        vST = 3
        k(f"L_load{role}:")
        if c.stamps: k(f"v_mov_b32 v{vST}, 0")
        k(f"""
        s_sub_u32 s{sT2}, s{sWAVE}, 4          ; w
        s_lshl_b32 s{sLW}, s{sT2}, 12
        s_and_b32 s{sW01}, s{sT2}, 1
        ; ---- x voffsets
        v_lshrrev_b32 v{vT}, 3, v1             ; l>>3
        v_lshrrev_b32 v{vT+1}, 4, v1           ; l>>4
        v_and_b32 v{vT+2}, 7, v1
        v_xor_b32 v{vT+2}, v{vT+2}, v{vT+1}
        v_lshlrev_b32 v{vT+2}, 4, v{vT+2}
        v_lshl_add_u32 v{vT+2}, v{vT}, 10, v{vT+2}
        s_lshl_b32 s{sT0}, s{sRB}, 17
        s_lshl_b32 s{sT1}, s{sT2}, 15
        s_add_u32 s{sT0}, s{sT0}, s{sT1}
        v_add_u32 v{vX}, s{sT0}, v{vT+2}
        v_xor_b32 v{vX+1}, 64, v{vX}
        v_add_u32 v{vX+2}, {2*7168}, v{vX}
        v_add_u32 v{vX+3}, {3*7168}, v{vX+1}
        v_add_u32 v{vX+1}, {7168}, v{vX+1}
        v_bfe_u32 v{vT+2}, v1, 2, 2
        v_xor_b32 v{vT+2}, v{vT+2}, v{vT+1}
        v_and_b32 v{vT+3}, 1, v{vT+2}
        v_lshlrev_b32 v{vT+3}, 6, v{vT+3}
        v_and_b32 v{vT}, 3, v1
        v_lshl_add_u32 v{vT+3}, v{vT}, 4, v{vT+3}
        v_lshrrev_b32 v{vT+2}, 1, v{vT+2}      ; half
        s_lshl_b32 s{sT0}, s{sT2}, 4
        v_add_u32 v{vT+1}, s{sT0}, v{vT+1}     ; R (i=0)
        v_mul_u32_u24 v{vT+4}, {pitch}, v{vT+1}
        v_add_u32 v{vT+4}, v{vT+4}, v{vT+3}
        """)
        if role == 0:
            k(f"""
            s_lshl_b32 s{sT0}, s{sJJ}, 7
            s_add_u32 s{sT1}, s{sT0}, 1024
            v_lshl_add_u32 v{vWA}, v{vT+2}, 10, v{vT+4}
            v_add_u32 v{vWA}, s{sT1}, v{vWA}
            """)
        else:
            k(f"""
            s_lshl_b32 s{sT1}, s{sJJ}, 8
            v_lshl_add_u32 v{vWA}, v{vT+2}, 7, v{vT+4}
            v_add_u32 v{vWA}, s{sT1}, v{vWA}
            s_lshl_b32 s{sT0}, s{sJJ}, 7
            s_add_u32 s{sT0}, s{sT0}, 2048
            """)
        for i in (1, 2, 3): k(f"v_add_u32 v{vWA+i}, {i*(4*pitch-1024)}, v{vWA}")
        k("s_waitcnt lgkmcnt(0)")
        if c.stamps: k(f"v_writelane_b32 v{vST}, s{sST}, 0")
        self.mk_srd(sX, pX, 2048*1024)
        self.mk_srd(sW1, pWQ if role == 0 else pW1, 512*pitch)
        bars, sched, slot = self.schedule(role)
        vm = []
        def issue(it):
            kind, t = it
            s = t - 12
            if kind == "A" and t < 8:
                k(f"s_xor_b32 s{sT1}, s{sROT}, {t}\ns_lshl_b32 s{sT1}, s{sT1}, 7"); v, r, aux = vX, sX, ""
            elif kind == "W" and t < 8:
                k(f"s_xor_b32 s{sT1}, s{sROT}, {t}\ns_mul_i32 s{sT1}, s{sT1}, {64*pitch}"); v, r, aux = vWA, sW1, ""
            elif kind == "W" and t < 12:
                k(f"s_lshr_b32 s{sT1}, s{sROT}, 1\ns_xor_b32 s{sT1}, s{sT1}, {t-8}\ns_mul_i32 s{sT1}, s{sT1}, {128*pitch}"); v, r, aux = vWB, sW1, ""
            elif kind == "W":
                if s < 8: k(f"s_xor_b32 s{sT1}, s{sROT2}, {s}\ns_lshl_b32 s{sT1}, s{sT1}, 17")
                else: k(f"s_mov_b32 s{sT1}, {(s if s < 11 else s-11) << 17}")
                v, r, aux = vW2, (sW2 if s < 11 else sWO), ""
            else:
                self.flag_wait()
                nxt = [x for x in flagq if x[1] > t]
                if nxt: self.flag_prefetch(nxt[0])
                if s == 11:
                    pass
                if s < 8: k(f"s_xor_b32 s{sT1}, s{sROT2}, {s}\ns_lshl_b32 s{sT1}, s{sT1}, 13")
                else: k(f"s_mov_b32 s{sT1}, {s << 13}")
                v, r, aux = vA2, sWS, "sc1"
            k(f"s_add_u32 m0, s{sLW}, {slot[it]*SLOT}")
            for i in range(4):
                vv = v if v == vA2 else v + i
                k(f"buffer_load_dwordx4 v{vv}, {srd(r)}, s{sT1} offen offset:{i*1024} {aux} lds")
                vm.append(it)
        flagq = [("A", t) for t in range(12, 27)]
        for i, items in enumerate(sched):
            cur = bars[i-1] if i > 0 else -1
            if i == 0:
                for it in items[:2]: issue(it)
                k(f"s_load_dword s{sTAG}, s[{pWS}:{pWS+1}], {WS_EPOCH}")
                k(f"""
                s_and_b32 s{sT1}, s{sROT}, 1
                v_xor_b32 v{vT+5}, s{sT1}, v{vT+2}
                v_mul_u32_u24 v{vT+5}, {64*pitch}, v{vT+5}
                v_add3_u32 v{vWB}, v{vT+5}, v{vT+4}, s{sT0}
                """)
                if role == 1:
                    k(f"""
                    v_add_u32 v{vT+5}, s{sT0}, v{vT+3}
                    v_cmp_le_u32 vcc, 2752, v{vT+5}
                    v_mov_b32 v{vT+5}, 0x80000000
                    v_cndmask_b32 v{vWB}, v{vWB}, v{vT+5}, vcc
                    """)
                for j in (1, 2, 3): k(f"v_add_u32 v{vWB+j}, {j*(4*pitch-1024)}, v{vWB}")
                for it in items[2:]: issue(it)
                k(f"""
                v_lshl_add_u32 v{vW2}, v{vT+1}, 10, v{vT+3}
                v_lshl_add_u32 v{vW2}, v{vT+2}, 16, v{vW2}
                s_lshl_b32 s{sT0}, s{sCB}, 7
                v_add_u32 v{vW2}, s{sT0}, v{vW2}
                """)
                for j in (1, 2, 3): k(f"v_add_u32 v{vW2+j}, {j*(4096-1024)}, v{vW2}")
                k(f"""
                s_lshr_b32 s{sT0}, s{sT2}, 1
                s_lshl_b32 s{sT1}, s{sTB}, 1
                s_add_u32 s{sT0}, s{sT0}, s{sT1}       ; tg
                s_lshl_b32 s{sT1}, s{sT0}, 7
                s_add_u32 s{sT1}, s{sT1}, {WS_FLAGA}
                s_add_u32 s{sFB0}, s{pWS}, s{sT1}
                s_addc_u32 s{sFB1}, s{pWS+1}, 0
                s_mul_i32 s{sT0}, s{sT0}, {A2_TG}
                s_lshl_b32 s{sT1}, s{sW01}, 12
                s_add_u32 s{sT0}, s{sT0}, s{sT1}
                s_add_u32 s{sT0}, s{sT0}, {WS_A2}
                v_lshlrev_b32 v{vA2}, 4, v1
                v_add_u32 v{vA2}, s{sT0}, v{vA2}
                """)
                self.mk_srd(sW2, pW2, 1376*1024)
                self.mk_srd(sWO, pWO, 512*1024)
                self.mk_srd(sWS, pWS, WS_USED)
                if role == 1:
                    self.mk_srd(sGW, pGW, 1024)
                    k(f"""
                    s_lshl_b32 s{sT0}, s{sROT}, 3
                    v_xor_b32 v{vT+5}, s{sT0}, v1
                    v_lshlrev_b32 v{vT+5}, 4, v{vT+5}
                    s_mov_b32 m0, {M_GW}
                    buffer_load_dwordx4 v{vT+5}, {srd(sGW)}, 0 offen lds
                    """)
                    vm.append(("W", 8))
                k("s_waitcnt lgkmcnt(0)")
                self.tag_from_epoch()
            else:
                if cur == c.firstA2 - 1 or (c.firstA2 == 9 and role == 0 and cur == "8x"):
                    self.flag_prefetch(flagq[0])
                gathered = False
                if role == 0 and cur == c.G:
                    self.kv_gather_issue(vm)
                    gathered = True
                for it in items: issue(it)
                if gathered: self.kv_gather_finish(vm)
                if cur == 22:
                    self.flag_wait_now(14)
            if i < len(bars):
                nb = bars[i]
                if nb != "8x":
                    last = max([j for j, x in enumerate(vm) if x != "X" and x[1] == nb], default=-1)
                    if last >= 0:
                        k(f"s_waitcnt vmcnt({len(vm) - 1 - last})")
                k("s_barrier")
                self.stamp(1 + i, vST)
        self.stamp_flush(vST, vT, 1)
        k("s_endpgm")
        self.sched_info = getattr(self, "sched_info", {})
        self.sched_info[role] = (bars, sched, slot)

    def flag_off(self, it, dst):
        k = self.k
        s = it[1] - 12
        if s < 8: k(f"s_xor_b32 s{dst}, s{sROT2}, {s}\ns_lshl_b32 s{dst}, s{dst}, 2")
        else:
            base = 8 + 2*(s-8) if s < 11 else 16 + 2*(s-11)
            k(f"s_add_u32 s{dst}, s{sW01}, {base}\ns_lshl_b32 s{dst}, s{dst}, 2")
    def flag_prefetch(self, it):
        self.flag_off(it, sEXS)
        self.k(f"s_load_dword s{sFLG}, s[{sFB0}:{sFB1}], s{sEXS} glc")
    def flag_wait(self):
        k = self.k
        l0, l1 = k.label("FW"), k.label("FD")
        k(f"""
        {l0}:
        s_waitcnt lgkmcnt(0)
        s_cmp_eq_u32 s{sFLG}, s{sTAG}
        s_cbranch_scc1 {l1}
        s_load_dword s{sFLG}, s[{sFB0}:{sFB1}], s{sEXS} glc
        s_sub_u32 s{sBUD}, s{sBUD}, 1
        s_cbranch_scc0 {l0}
        s_mov_b32 s{sBUD}, 0
        s_waitcnt lgkmcnt(0)
        {l1}:
        """)
    def flag_wait_now(self, idx):
        k = self.k
        l0, l1 = k.label("FW"), k.label("FD")
        k(f"""
        {l0}:
        s_load_dword s{sT0}, s[{sFB0}:{sFB1}], {idx*4} glc
        s_waitcnt lgkmcnt(0)
        s_cmp_eq_u32 s{sT0}, s{sTAG}
        s_cbranch_scc1 {l1}
        s_sub_u32 s{sBUD}, s{sBUD}, 1
        s_cbranch_scc0 {l0}
        s_mov_b32 s{sBUD}, 0
        {l1}:
        """)

    def kv_gather_issue(self, vm):
        k = self.k
        l0, l1 = k.label("KW"), k.label("KD")
        vK = 32
        k(f"""
        s_sub_u32 s{sT2}, s{sWAVE}, 4
        s_lshl_b32 s{sT0}, s{sJJ}, 2
        s_add_u32 s{sT0}, s{sT0}, s{sT2}
        s_lshl_b32 s{sT0}, s{sT0}, 7
        s_add_u32 s{sT0}, s{sT0}, {WS_FLAGK}
        {l0}:
        s_load_dwordx16 s[{sKF}:{sKF+15}], s[{pWS}:{pWS+1}], s{sT0} glc
        s_waitcnt lgkmcnt(0)
        s_xor_b32 s{sT1}, s{sKF}, s{sTAG}
        """)
        for i in range(1, 16):
            k(f"s_xor_b32 s{sKF+i}, s{sKF+i}, s{sTAG}\ns_or_b32 s{sT1}, s{sT1}, s{sKF+i}")
        k(f"""
        s_cbranch_scc0 {l1}
        s_sub_u32 s{sBUD}, s{sBUD}, 1
        s_cbranch_scc0 {l0}
        s_mov_b32 s{sBUD}, 0
        {l1}:
        s_mul_i32 s{sT0}, s{sJJ}, {16*KVP_STRIDE}
        s_add_u32 s{sT0}, s{sT0}, {WS_KVP}
        s_lshl_b32 s{sT1}, s{sT2}, 10
        v_lshlrev_b32 v28, 4, v1
        v_add_u32 v28, s{sT1}, v28
        v_lshlrev_b32 v29, 2, v1
        v_add_u32 v29, 4096, v29
        s_cmp_eq_u32 s{sT2}, 0
        s_cselect_b32 s{sT1}, 0, 0x80000000
        v_add_u32 v29, s{sT1}, v29
        """)
        for i in range(16):
            k(f"buffer_load_dwordx4 {vr(vK+4*i)}, v28, {srd(sWS)}, s{sT0} offen sc1")
            k(f"buffer_load_dword v{96+i}, v29, {srd(sWS)}, s{sT0} offen sc1")
            if i < 15: k(f"s_add_u32 s{sT0}, s{sT0}, {KVP_STRIDE}")
            vm.append("X"); vm.append("X")
        self.kv_last = len(vm) - 1
    def kv_gather_finish(self, vm):
        k = self.k
        vK = 32
        k(f"s_waitcnt vmcnt({len(vm) - 1 - self.kv_last})")
        st = 1
        while st < 16:
            for i in range(0, 16, 2*st):
                for e in range(4): k(f"v_add_f32 v{vK+4*i+e}, v{vK+4*i+e}, v{vK+4*(i+st)+e}")
                k(f"v_add_f32 v{96+i}, v{96+i}, v{96+i+st}")
            st *= 2
        l1 = k.label("KZ")
        k(f"""
        v_cvt_pk_bf16_f32 v{vK}, v{vK}, v{vK+1}
        v_cvt_pk_bf16_f32 v{vK+1}, v{vK+2}, v{vK+3}
        v_cvt_pk_bf16_f32 v96, v96, v96
        s_sub_u32 s{sT2}, s{sWAVE}, 4
        s_lshr_b32 s{sT0}, s{sT2}, 1
        s_lshl_b32 s{sT0}, s{sT0}, 10
        s_lshl_b32 s{sT1}, s{sW01}, 3
        s_add_u32 s{sT0}, s{sT0}, s{sT1}
        s_add_u32 s{sT0}, s{sT0}, {M_KVF}
        v_lshlrev_b32 v28, 4, v1
        v_add_u32 v28, s{sT0}, v28
        ds_write_b64 v28, v[{vK}:{vK+1}]
        s_cmp_lg_u32 s{sT2}, 0
        s_cbranch_scc1 {l1}
        v_lshrrev_b32 v28, 4, v1
        v_lshlrev_b32 v28, 5, v28
        v_bfe_u32 v29, v1, 2, 1
        v_lshl_add_u32 v28, v29, 4, v28
        v_bfe_u32 v29, v1, 3, 1
        v_lshl_add_u32 v28, v29, 3, v28
        v_and_b32 v29, 3, v1
        v_lshl_add_u32 v28, v29, 1, v28
        v_add_u32 v28, {M_ZF}, v28
        ds_write_b16 v28, v96
        {l1}:
        s_waitcnt lgkmcnt(0)
        """)

    def consumer_common(self):
        k = self.k; c = self.c
        k("L_consumer:")
        if c.prio: k("s_setprio 2")
        if c.stamps: k("v_mov_b32 v39, 0")
        k(f"""
        ; x read addresses v2..v5 : wave*4096 + t*128 + ((2ks+kh) ^ ((t>>1)&7))*16
        v_and_b32 v10, 31, v1                  ; t
        v_lshrrev_b32 v11, 5, v1               ; kh
        v_bfe_u32 v2, v1, 1, 3
        v_xor_b32 v2, v2, v11
        v_lshlrev_b32 v2, 4, v2
        v_lshl_add_u32 v2, v10, 7, v2
        s_lshl_b32 s{sT0}, s{sWAVE}, 12
        v_add_u32 v2, s{sT0}, v2
        v_xor_b32 v3, 32, v2
        v_xor_b32 v4, 64, v2
        v_xor_b32 v5, 96, v2
        v_bfe_u32 v36, v1, 2, 2                ; r
        v_and_b32 v37, 3, v1
        v_lshlrev_b32 v37, 3, v37
        v_bfe_u32 v38, v1, 4, 1
        v_lshl_add_u32 v37, v38, 5, v37
        v_mul_u32_u24 v38, 320, v36            ; r*256 + r*64
        v_add_u32 v37, v37, v38
        v_lshl_add_u32 v6, v11, 11, v37
        v_xor_b32 v7, 64, v6
        v_xor_b32 v8, 128, v6
        v_xor_b32 v9, 192, v6
        s_and_b32 s{sT0}, s{sWAVE}, 1
        s_lshl_b32 s{sT0}, s{sT0}, 6
        v_lshl_add_u32 v37, v11, 10, v37
        v_xor_b32 v37, s{sT0}, v37
        s_lshl_b32 s{sT0}, s{sRB}, 2
        s_add_u32 s{sT0}, s{sT0}, s{sWAVE}     ; tg
        s_lshl_b32 s{sFLG}, s{sT0}, 7          ; tg*128
        s_mul_i32 s{sT0}, s{sT0}, {A2_TG}
        s_add_u32 s{sT0}, s{sT0}, {WS_A2}
        v_lshlrev_b32 v10, 4, v1
        v_add_u32 v10, s{sT0}, v10
        s_mov_b32 s{sMASK16}, 0xffff0000
        s_mov_b32 s{sMASK16+1}, 0xffff0000
        s_waitcnt lgkmcnt(0)
        s_load_dword s{sTAG}, s[{pWS}:{pWS+1}], {WS_EPOCH}
        """)
        if c.stamps: k(f"v_writelane_b32 v39, s{sST}, 0")
        self.mk_srd(sWS, pWS, WS_USED)
        self.mk_srd(sOUT, pOUT, 2048*1024)
        k("s_waitcnt lgkmcnt(0)")
        self.tag_from_epoch()
        k(f"""
        s_cmp_eq_u32 s{sROLE}, 0
        s_cbranch_scc0 L_cons1
        """)

    class DS:
        def __init__(self, k):
            self.k = k; self.n = 0; self.done = 0; self.base = {}
        def addr(self, v, a):
            b = self.base.get(v, 0)
            if not (0 <= a - b <= 65535):
                nb = a & ~0x3fff
                if nb + 65535 > LDS_BYTES + 16384: nb = min(nb, 98304)
                self.k(f"v_add_u32 v{v}, {(nb - b) & 0xffffffff}, v{v}")
                self.base[v] = b = nb
            return a - b
        def op(self, text):
            self.k(text); self.n += 1; return self.n
        def read128(self, dst, v, a):
            o = self.addr(v, a); return self.op(f"ds_read_b128 {vr(dst)}, v{v} offset:{o}")
        def tr(self, dst, v, a):
            o = self.addr(v, a); return self.op(f"ds_read_b64_tr_b16 v[{dst}:{dst+1}], v{v} offset:{o}")
        def wait(self, tok):
            if tok > self.done:
                assert self.n - tok <= 15
                self.k(f"s_waitcnt lgkmcnt({self.n - tok})"); self.done = tok
        def waitall(self): self.wait(self.n)

    def publish(self, flag_soff_expr, epoch_check=False):
        k = self.k
        k("s_waitcnt vmcnt(0)")
        k(flag_soff_expr)
        k(f"""
        v_mov_b32 v36, s{sTAG}
        v_mov_b32 v38, 0
        s_mov_b64 exec, 1
        buffer_store_dword v36, v38, {srd(sWS)}, s{sT0} offen sc1
        """)
        if epoch_check:
            k(f"""
            v_cmp_eq_u32 vcc, 255, v11
            s_and_b64 exec, exec, vcc
            buffer_store_dword v36, v38, {srd(sWS)}, 0 offen sc1
            """)
        k("s_mov_b64 exec, -1")

    def phi(self, src, dst):
        k = self.k
        k(f"s_mov_b32 s{sT1}, 0x3fb8aa3b\ns_mov_b32 s{sT2}, 0x358637bd")
        for r in range(0, 16, 2):
            k(f"""
            v_mul_f32 v36, s{sT1}, v{src+r}
            v_mul_f32 v38, s{sT1}, v{src+r+1}
            v_exp_f32_e64 v36, v36 clamp
            v_exp_f32_e64 v38, v38 clamp
            v_max_f32 v{src+r}, s{sT2}, v{src+r}
            v_max_f32 v{src+r+1}, s{sT2}, v{src+r+1}
            v_add_f32 v36, v36, v{src+r}
            v_add_f32 v38, v38, v{src+r+1}
            v_cvt_pk_bf16_f32 v{dst+r//2}, v36, v38
            """)

    def relu_store(self, src, kf_soff, off):
        k = self.k
        for r in range(0, 16, 2):
            k(f"v_cvt_pk_bf16_f32 v{src+r//2}, v{src+r}, v{src+r+1}")
        for r in range(8):
            k(f"v_pk_max_i16 v{src+r}, v{src+r}, 0")
        for f in range(2):
            k(f"buffer_store_dwordx4 {vr(src+4*f)}, v10, {srd(sWS)}, s{kf_soff} offen offset:{off+1024*f} sc1")

    def consumer(self, role):
        k = self.k; c = self.c
        bars, sched, slot = self.sched_info[role]
        ds = Gen.DS(k)
        vACC, vXF, vWB = 64, 128, 12
        if role == 1: k("L_cons1:")
        nbar = [0]
        def barrier(name):
            assert bars[nbar[0]] == name, (bars[nbar[0]], name)
            k("s_barrier"); nbar[0] += 1
            if c.stamps:
                self.stamp(nbar[0], 39); ds.done = ds.n
        M = []
        for t in range(8):
            for ks in range(4):
                for ct in range(4): M.append(dict(t=t, ks=ks, q=ct, xf=4*t+ks, acc=vACC+16*ct, first=(t == 0 and ks == 0), tr=(role == 1)))
        for u in range(4):
            for hf in range(2):
                for ks in range(4):
                    for ct in range(2): M.append(dict(t=8+u, ks=ks, q=2*hf+ct, xf=(2*u+hf)*4+ks, acc=vACC+16*ct, first=(u == 0 and hf == 0 and ks == 0), tr=True))
        xtok = {}
        seen = set()
        def reads(m):
            e = M[m]; t = e["t"]
            if t not in seen:
                seen.add(t); barrier(t)
                if t == 0:
                    if c.dbgtime: k("s_memrealtime s[100:101]\ns_waitcnt lgkmcnt(0)")
                    l = k.label("AT")
                    k(f"""
                    v_mov_b32 v11, 0
                    s_cmp_lg_u32 s{sWAVE}, 0
                    s_cbranch_scc1 {l}
                    v_mov_b32 v36, 1
                    v_mov_b32 v38, 0
                    s_mov_b64 exec, 1
                    global_atomic_add v11, v38, v36, s[{pDBG}:{pDBG+1}] sc0 sc1
                    s_mov_b64 exec, -1
                    {l}:
                    """)
            if t < 8 and e["ks"] == 0:
                ks = e["q"]
                xtok[4*t+ks] = ds.read128(vXF + 4*(4*t+ks), 2+ks, slot[("A", t)]*SLOT)
            b = vWB + 4*(m % c.NB)
            a = slot[("W", t)]*SLOT + e["ks"]*4096
            ds.tr(b, 6+e["q"], a); e["tok"] = ds.tr(b+2, 6+e["q"], a + 1024)
        def mfma(m):
            e = M[m]
            ds.wait(max(e["tok"], xtok[e["xf"]]))
            b = vWB + 4*(m % c.NB); x = vXF + 4*e["xf"]
            A, B = (b, x) if e["tr"] else (x, b)
            k(f"v_mfma_f32_32x32x16_bf16 {vr(e['acc'],16)}, {vr(A)}, {vr(B)}, {'0' if e['first'] else vr(e['acc'],16)}")
        for m in range(c.L): reads(m)
        skipB = k.label("SKB"); joinB = k.label("JB")
        for m in range(len(M)):
            if m == 128:
                if role == 1:
                    k(f"s_lshl_b32 s{sT2}, s{sJJ}, 13\ns_add_u32 s{sT1}, s{sT2}, 4096")
                    for ct in range(4):
                        self.relu_store(vACC+16*ct, sT2 if ct < 2 else sT1, (ct & 1)*2048)
                    k(f"s_cmp_ge_u32 s{sJJ}, 6\ns_cbranch_scc1 {skipB}")
                    saved = (ds.n, ds.done, dict(ds.base), nbar[0])
                else:
                    self.epiA_qkv(ds, slot, barrier)
            if m + c.L < len(M): reads(m + c.L)
            mfma(m)
            e = M[m]
            pub = c.pub_hA if role == 1 else c.pub_kv
            if m == 128 + (pub[0]-8)*16 + pub[1]:
                if role == 1:
                    self.publish(f"s_lshl_b32 s{sT0}, s{sJJ}, 2\ns_add_u32 s{sT0}, s{sT0}, s{sFLG}\ns_add_u32 s{sT0}, s{sT0}, {WS_FLAGA}", True)
                else:
                    self.publish(f"""s_lshl_b32 s{sT0}, s{sJJ}, 2
                    s_add_u32 s{sT0}, s{sT0}, s{sWAVE}
                    s_lshl_b32 s{sT0}, s{sT0}, 5
                    s_add_u32 s{sT0}, s{sT0}, s{sRB}
                    s_lshl_b32 s{sT0}, s{sT0}, 2
                    s_add_u32 s{sT0}, s{sT0}, {WS_FLAGK}""", True)
        if role == 1:
            k(f"s_lshl_b32 s{sT2}, s{sJJ}, 12\ns_add_u32 s{sT2}, s{sT2}, {64*1024}")
            for ct in range(2): self.relu_store(vACC+16*ct, sT2, ct*2048)
            k(f"s_branch {joinB}")
            endstate = (ds.n, ds.done, dict(ds.base), nbar[0])
            k(f"{skipB}:")
            ds.n, ds.done, ds.base, nbar[0] = saved
            ds.waitall()
            noG = k.label("NG")
            k(f"s_cmp_lg_u32 s{sJJ}, 6\ns_cbranch_scc1 {noG}")
            k(f"v_lshrrev_b32 v36, 5, v1\nv_lshlrev_b32 v36, 4, v36\nv_add_u32 v36, {M_GW}, v36")
            toks = {}
            for f in range(32 + 4):
                if f < 32: toks[f] = ds.op(f"ds_read_b128 {vr(vWB+4*(f%6))}, v36 offset:{32*f}")
                if f >= 4:
                    g = f - 4
                    ds.wait(toks[g])
                    k(f"v_mfma_f32_32x32x16_bf16 {vr(vACC,16)}, {vr(vWB+4*(g%6))}, {vr(vXF+4*g)}, {'0' if g == 0 else vr(vACC,16)}")
            k(f"""
            v_mul_f32 v36, 0xbfb8aa3b, v{vACC}
            v_exp_f32 v36, v36
            v_add_f32 v36, 1.0, v36
            v_rcp_f32 v36, v36
            v_and_b32 v38, 31, v1
            v_lshlrev_b32 v38, 2, v38
            s_add_u32 s{sT0}, s{sFLG}, {WS_G}
            buffer_store_dword v36, v38, {srd(sWS)}, s{sT0} offen sc1
            {noG}:
            """)
            while bars[nbar[0]] != c.pub_hA[0] + 1: barrier(bars[nbar[0]])
            self.publish(f"s_lshl_b32 s{sT0}, s{sJJ}, 2\ns_add_u32 s{sT0}, s{sT0}, s{sFLG}\ns_add_u32 s{sT0}, s{sT0}, {WS_FLAGA}", True)
            while bars[nbar[0]] != 12: barrier(bars[nbar[0]])
            assert nbar[0] == endstate[3]
            k(f"{joinB}:\ns_nop 7")
            ds.n = ds.done = 0
        else:
            for ct in range(2): self.phi(vACC+16*ct, vACC+8*ct)
        k(f"""
        s_lshr_b32 s{sT0}, s{sWAVE}, 1
        s_lshl_b32 s{sT0}, s{sT0}, 13
        v_lshlrev_b32 v2, 4, v1
        v_add_u32 v2, s{sT0}, v2
        v_mov_b32 v3, v37
        v_xor_b32 v4, 128, v37
        """)
        ds.base = {}
        vB, vA = 96, 112
        fA, fW = 128, 160
        tok = {}
        def rd2(t, kf):
            a = slot[("A", t)]*SLOT + kf*1024
            w = slot[("W", t)]*SLOT + (kf & 3)*4096
            ds.read128(fA+4*kf, 2, a)
            ds.tr(fW+4*kf, 3+(kf >> 2), w); tok[(t, kf)] = ds.tr(fW+4*kf+2, 3+(kf >> 2), w + 2048)
        def mf2(t, kf):
            ds.wait(tok[(t, kf)])
            acc = vB if t < 23 else vA
            first = kf == 0 and t in (12, 23)
            k(f"v_mfma_f32_32x32x16_bf16 {vr(acc,16)}, {vr(fW+4*kf)}, {vr(fA+4*kf)}, {'0' if first else vr(acc,16)}")
        def extras(t):
            if role == 1 and t == c.pub_hB:
                self.publish(f"s_lshl_b32 s{sT0}, s{sJJ}, 2\ns_add_u32 s{sT0}, s{sT0}, s{sFLG}\ns_add_u32 s{sT0}, s{sT0}, {WS_FLAGA+32}")
            if role == 0 and t == c.G + 1: self.o_compute(ds)
            if role == 0 and t == c.pub_o:
                self.publish(f"s_lshl_b32 s{sT0}, s{sJJ}, 2\ns_add_u32 s{sT0}, s{sT0}, s{sFLG}\ns_add_u32 s{sT0}, s{sT0}, {WS_FLAGA+64}")
            if t == 23:
                k(f"""
                s_lshl_b32 s{sT0}, s{sTB}, 1
                s_lshr_b32 s{sT1}, s{sWAVE}, 1
                s_add_u32 s{sT0}, s{sT0}, s{sT1}
                s_lshl_b32 s{sT1}, s{sT0}, 7
                s_add_u32 s{sT1}, s{sT1}, {WS_G}
                v_and_b32 v5, 31, v1
                v_lshlrev_b32 v6, 2, v5
                buffer_load_dword v7, v6, {srd(sWS)}, s{sT1} offen sc1
                s_lshl_b32 s{sT0}, s{sT0}, 15
                s_lshl_b32 s{sT1}, s{sCB}, 7
                s_add_u32 s{sT0}, s{sT0}, s{sT1}
                s_and_b32 s{sT1}, s{sWAVE}, 1
                s_lshl_b32 s{sT1}, s{sT1}, 6
                s_add_u32 s{sT0}, s{sT0}, s{sT1}
                v_lshrrev_b32 v6, 5, v1
                v_lshlrev_b32 v6, 4, v6
                v_lshl_add_u32 v6, v5, 10, v6
                v_add_u32 v6, s{sT0}, v6
                """)
        ds.waitall()
        barrier(12)
        for kf in range(4): rd2(12, kf)
        extras(12)
        for t in range(12, 27):
            for kf in range(8):
                if kf == 5 and t < 26:
                    ds.waitall()
                    barrier(t+1)
                mf2(t, kf)
                if kf < 4: rd2(t, kf+4)
                elif kf >= 5 and t < 26:
                    rd2(t+1, kf-5)
                    if kf == 7:
                        rd2(t+1, 3)
                        extras(t+1)
        assert nbar[0] == len(bars)
        k("s_waitcnt vmcnt(0)")
        for r in range(16):
            k(f"v_sub_f32 v{vA+r}, v{vA+r}, v{vB+r}")
        for r in range(16):
            k(f"v_fma_f32 v{vA+r}, v{vA+r}, v7, v{vB+r}")
        for r in range(8):
            k(f"v_cvt_pk_bf16_f32 v{vB+r}, v{vA+2*r}, v{vA+2*r+1}")
        for p in range(2):
            k(f"v_permlane32_swap_b32 v{vB+4*p}, v{vB+4*p+2}\nv_permlane32_swap_b32 v{vB+4*p+1}, v{vB+4*p+3}")
        for p in range(2):
            k(f"buffer_store_dwordx4 {vr(vB+4*p)}, v6, {srd(sOUT)}, 0 offen offset:{32*p}")
        if c.dbgtime:
            k(f"""
            s_waitcnt vmcnt(0)
            s_memrealtime s[4:5]
            s_memtime s[6:7]
            s_waitcnt lgkmcnt(0)
            s_not_b32 s{sT0}, s96
            s_sub_u32 s{sT1}, s4, s96
            s_sub_u32 s{sT2}, s6, s98
            s_sub_u32 s100, s100, s96
            s_mov_b64 exec, 1
            v_mov_b32 v38, 0
            v_mov_b32 v2, s{sT0}
            v_mov_b32 v3, s96
            v_mov_b32 v4, s4
            v_mov_b32 v5, s{sT1}
            v_mov_b32 v6, s{sT2}
            v_mov_b32 v7, s100
            global_atomic_umax v38, v2, s[{pDBG}:{pDBG+1}] offset:4 sc1
            global_atomic_umax v38, v3, s[{pDBG}:{pDBG+1}] offset:8 sc1
            global_atomic_umax v38, v4, s[{pDBG}:{pDBG+1}] offset:12 sc1
            global_atomic_add v38, v5, s[{pDBG}:{pDBG+1}] offset:16 sc1
            global_atomic_add v38, v6, s[{pDBG}:{pDBG+1}] offset:20 sc1
            global_atomic_add v38, v7, s[{pDBG}:{pDBG+1}] offset:24 sc1
            """)
        if c.stamps:
            k("s_waitcnt vmcnt(0)")
            self.stamp(40, 39)
            self.stamp_flush(39, 36, 1)
        k("s_endpgm")

    def epiA_qkv(self, ds, slot, barrier):
        k = self.k
        self.phi(64, 64)
        self.phi(80, 72)
        for ct in (2, 3):
            for r in range(0, 16, 2):
                k(f"v_cvt_pk_bf16_f32 v{64+8*ct+r//2}, v{64+16*ct+r}, v{64+16*ct+r+1}")
        k(f"""
        v_and_b32 v36, 4, v1
        v_cmp_eq_u32 vcc, 0, v36
        v_mov_b32 v36, 0x3f803f80
        v_cndmask_b32 v56, 0, v36, vcc
        v_xor_b32 v60, v56, v36
        """)
        for i in (1, 2, 3): k(f"v_mov_b32 v{56+i}, v56\nv_mov_b32 v{60+i}, v60")
        for T in range(2):
            for f in range(2):
                k(f"v_mfma_f32_32x32x16_bf16 {vr(96+16*T,16)}, {vr(64+8*T+4*f)}, {vr(80+8*T+4*f)}, {'0' if f == 0 else vr(96+16*T,16)}")
        for T in range(2):
            for f in range(2):
                k(f"v_mfma_f32_32x32x16_bf16 {vr(40,16)}, {vr(56+4*T)}, {vr(64+8*T+4*f)}, {'0' if (T == 0 and f == 0) else vr(40,16)}")
        S = slot["S"]*SLOT
        k(f"""
        s_lshl_b32 s{sT0}, s{sWAVE}, 12
        s_add_u32 s{sT0}, s{sT0}, {S}
        v_lshlrev_b32 v36, 4, v1
        v_add_u32 v38, s{sT0}, v36
        """)
        for T in range(2):
            for r in range(8):
                k(f"v_cndmask_b32 v{96+16*T+r}, v{96+16*T+r}, v{96+16*T+8+r}, s[{sMASK16}:{sMASK16+1}]")
            for q in range(2):
                ds.op(f"ds_write_b128 v38, {vr(96+16*T+4*q)} offset:{(2*T+q)*1024}")
        k(f"""
        s_lshl_b32 s{sT0}, s{sWAVE}, 8
        s_add_u32 s{sT0}, s{sT0}, {M_ZST}
        v_lshlrev_b32 v56, 2, v1
        v_add_u32 v57, s{sT0}, v56
        """)
        ds.op(f"ds_write_b32 v57, v40")
        k(f"""
        s_lshl_b32 s{sT0}, s{sWAVE}, 10
        s_add_u32 s{sT1}, s{sT0}, {S}
        v_add_u32 v38, s{sT1}, v36
        v_add_u32 v57, {M_ZST}, v56
        v_add_u32 v36, s{sT0}, v36
        """)
        ds.waitall()
        barrier("8x")
        for w in range(4): ds.op(f"ds_read_b128 {vr(96+4*w)}, v38 offset:{w*4096}")
        for w in range(4): ds.op(f"ds_read_b32 v{112+w}, v57 offset:{w*256}")
        k(f"""
        s_lshl_b32 s{sT0}, s{sJJ}, 4
        s_add_u32 s{sT0}, s{sT0}, s{sRB}
        s_mul_i32 s{sT0}, s{sT0}, {KVP_STRIDE}
        s_add_u32 s{sT0}, s{sT0}, {WS_KVP}
        s_cmp_eq_u32 s{sWAVE}, 0
        s_cselect_b32 s{sT1}, 0, 0x80000000
        s_add_u32 s{sT1}, s{sT1}, 4096
        v_add_u32 v56, s{sT1}, v56
        """)
        ds.waitall()
        for e in range(4):
            k(f"v_add_f32 v{96+e}, v{96+e}, v{100+e}\nv_add_f32 v{104+e}, v{104+e}, v{108+e}")
        k("v_add_f32 v112, v112, v113\nv_add_f32 v114, v114, v115")
        for e in range(4): k(f"v_add_f32 v{96+e}, v{96+e}, v{104+e}")
        k("v_add_f32 v112, v112, v114")
        k(f"buffer_store_dwordx4 {vr(96)}, v36, {srd(sWS)}, s{sT0} offen sc1")
        k(f"buffer_store_dword v112, v56, {srd(sWS)}, s{sT0} offen sc1")

    def o_compute(self, ds):
        k = self.k
        k(f"""
        v_lshlrev_b32 v36, 4, v1
        v_add_u32 v36, {M_KVF}, v36
        v_lshrrev_b32 v38, 5, v1
        v_lshlrev_b32 v38, 4, v38
        v_add_u32 v38, {M_ZF}, v38
        """)
        toks = []
        for T in range(2):
            for f in range(2):
                k(f"v_add_u32 v5, {1024*T}, v36\nv_add_u32 v6, {64*T+32*f}, v38")
                if f == 0: k(f"v_cndmask_b32 v5, v5, v6, s[{sMASK16}:{sMASK16+1}]")
                else: k(f"v_cndmask_b32 v5, v6, v5, s[{sMASK16}:{sMASK16+1}]")
                while ds.n - ds.done >= 15: ds.wait(ds.done + 1)
                toks.append(ds.op(f"ds_read_b128 {vr(12+4*(2*T+f))}, v5"))
        k(f"s_lshl_b32 s{sT0}, s{sJJ}, 12\ns_add_u32 s{sT0}, s{sT0}, {88*1024}\ns_mov_b32 s{sT1}, 0x358637bd")
        D = [80, 40, 192, 208]
        for h in range(4):
            ds.wait(toks[h])
            k(f"v_mfma_f32_32x32x16_bf16 {vr(D[h],16)}, {vr(12+4*h)}, {vr(64+4*h)}, 0")
        for h in range(4):
            f = h & 1
            num = D[h] + 8*f; den = D[h] + 8*(1-f)
            k(f"v_add_f32 v{den}, s{sT1}, v{den}\nv_rcp_f32 v{den}, v{den}")
            for r in range(8): k(f"v_mul_f32 v{num+r}, v{num+r}, v{den}")
            for r in range(4): k(f"v_cvt_pk_bf16_f32 v{num+r}, v{num+2*r}, v{num+2*r+1}")
            k(f"buffer_store_dwordx4 {vr(num)}, v10, {srd(sWS)}, s{sT0} offen offset:{1024*h} sc1")

    def build(self, path):
        self.prologue()
        self.loader(0); self.loader(1)
        self.consumer_common()
        self.consumer(0); self.consumer(1)
        self.k("L_end:\ns_endpgm")
        self.k.lines, n = hazard.pad(self.k.lines)
        emit(path, [self.k])
        return n

def make(path, **kw):
    c = Cfg()
    c.pub_hB = 14; c.pub_o = 16
    c.cap = {(0, 8): 3, (1, 8): 3, (0, 11): 3, (1, 11): 3}
    for a, b in kw.items(): setattr(c, a, b)
    g = Gen(c)
    n = g.build(path)
    return g, n

if __name__ == "__main__":
    g, n = make("k1.s")
    for role in (0, 1):
        bars, sched, slot = g.sched_info[role]
        print("role", role)
        for i, it in enumerate(sched):
            print("  after", bars[i-1] if i else "start", [f"{a}{t}@{slot[(a,t)]}" for a, t in it])
    print("nops added", n, "lines", len(g.k.lines))
    make("k1s.s", stamps=True)
    make("k1d.s", dbgtime=True)
```

```python
import sys
from asmlib import *
import hazard

WS_EPOCH = 0
WS_FLAGA = 4096
WS_FLAGK = 16384
WS_G     = 24576
WS_KVP   = 65536
KVP_STRIDE = 5120
WS_A2    = 1 << 20
A2_TG    = 120 * 1024
WS_USED  = WS_A2 + 64 * A2_TG
WS_STAMP = 16 << 20

SLOT = 16384
NSLOT = 9
MISC = NSLOT * SLOT
M_ZST = MISC
M_KVF = MISC + 1024
M_ZF  = MISC + 3072
M_GW  = MISC
LDS_BYTES = MISC + 4096

sX, sW1, sW2, sWO, sWS, sOUT, sGW = 8, 12, 16, 20, 24, 28, 32
pX, pWQ, pWO, pW1, pW2, pGW, pOUT, pDBG, pWS = 36, 38, 40, 44, 46, 48, 50, 52, 54
sWAVE, sRB, sROLE, sJJ, sTB, sCB, sROT, sROT2, sTAG, sBUD = 56, 57, 58, 59, 60, 61, 62, 63, 64, 65
sLW, sT0, sT1, sT2, sFLG, sFB0, sFB1, sW01 = 66, 67, 68, 69, 70, 72, 73, 71
sMASK16 = 74
sEXS = 76
sKF = 80
sST = 96

def srd(b): return f"s[{b}:{b+3}]"
def vr(b, n=4): return f"v[{b}:{b+n-1}]"

class Cfg:
    L = 4
    NB = 6
    G = 13
    pub_hA = (9, 8)
    pub_kv = (9, 0)
    firstA2 = 10
    nW2pre = 5
    stamps = False
    rot = True
    rot2 = True
    prio = True
    dbgtime = False

class Gen:
    def __init__(self, cfg):
        self.c = cfg
        self.k = K(KN + "_kernel", 256, 512, LDS_BYTES, vgpr=256, sgpr=102)
        self.nstamp = 0

    def stamp(self, idx, vreg):
        if not self.c.stamps: return
        k = self.k
        k(f"s_memrealtime s[{sST}:{sST+1}]\ns_waitcnt lgkmcnt(0)\nv_writelane_b32 v{vreg}, s{sST}, {idx}")
    def stamp_flush(self, vreg, vtmp, lane):
        if not self.c.stamps: return
        k = self.k
        k(f"""
        s_lshl_b32 s{sT0}, s2, 3
        s_add_u32 s{sT0}, s{sT0}, s{sWAVE}
        s_lshl_b32 s{sT0}, s{sT0}, 8
        s_add_u32 s{sT0}, s{sT0}, {WS_STAMP}
        v_lshlrev_b32 v{vtmp}, 2, v{lane}
        v_add_u32 v{vtmp}, s{sT0}, v{vtmp}
        global_store_dword v{vtmp}, v{vreg}, s[{pWS}:{pWS+1}]
        """)

    def schedule(self, role):
        c = self.c
        bars = list(range(27))
        if role == 0: bars.insert(9, "8x")
        pos = {b: i for i, b in enumerate(bars)}
        order = []
        for t in range(8): order += [("A", t), ("W", t)]
        order += [("W", t) for t in range(8, 12)]
        order += [("W", t) for t in range(12, 12 + c.nW2pre)]
        a, w = 12, 12 + c.nW2pre
        while a < 27 or w < 27:
            if a < 27: order.append(("A", a)); a += 1
            if a < w - 1 and a < 27: order.append(("A", a)); a += 1
            if w < 27 and w <= a + 2: order.append(("W", w)); w += 1
        def freebar(it):
            kind, t = it
            if kind == "A" or t >= 11: return t + 1
            return t + 2
        def minint(it):
            kind, t = it
            if kind == "W" or t < 8: return -1
            if t < 20: return c.firstA2
            if t < 23: return c.pub_hB
            return c.pub_o
        free = list(range(NSLOT))
        rel = {}
        slot = {}
        sched = []
        qi = 0
        for i in range(len(bars) + 1):
            cur = bars[i - 1] if i > 0 else -1
            if i > 0:
                free += rel.pop(cur, [])
            curt = 8.5 if cur == "8x" else cur
            if role == 0 and cur == 8:
                slot["S"] = free.pop(0); rel.setdefault(9, []).append(slot["S"])
            cap = 6 if i == 0 else c.cap.get((role, cur), 2)
            items = []
            while qi < len(order) and free and len(items) < cap and minint(order[qi]) <= curt:
                it = order[qi]; qi += 1
                slot[it] = free.pop(0)
                rel.setdefault(freebar(it), []).append(slot[it])
                items.append(it)
            sched.append(items)
        assert qi == len(order), (role, order[qi:])
        for i, items in enumerate(sched):
            for (kind, t) in items:
                assert i <= pos[t], (role, kind, t, i)
        return bars, sched, slot

    def prologue(self):
        k = self.k; c = self.c
        if c.stamps: k(f"s_memrealtime s[{sST}:{sST+1}]")
        if c.dbgtime: k(f"s_memrealtime s[96:97]\ns_memtime s[98:99]")
        k(f"""
        s_cmp_ge_u32 s2, 256
        s_cbranch_scc1 L_end
        s_load_dwordx16 s[36:51], s[0:1], 0
        s_load_dwordx4 s[52:55], s[0:1], 64
        v_lshrrev_b32 v1, 6, v0
        s_and_b32 s{sT0}, s2, 7
        v_readfirstlane_b32 s{sWAVE}, v1
        v_and_b32 v1, 63, v0
        s_lshr_b32 s{sT1}, s2, 3
        s_lshr_b32 s{sRB}, s{sT0}, 2
        s_lshl_b32 s{sRB}, s{sRB}, 3
        s_lshr_b32 s{sT2}, s{sT1}, 2
        s_add_u32 s{sRB}, s{sRB}, s{sT2}
        s_bfe_u32 s{sROLE}, s{sT1}, 0x10001
        s_and_b32 s{sJJ}, s{sT0}, 3
        s_lshl_b32 s{sJJ}, s{sJJ}, 1
        s_and_b32 s{sCB}, s{sT1}, 1
        s_add_u32 s{sJJ}, s{sJJ}, s{sCB}
        s_and_b32 s{sROT}, s{sT1}, 3
        s_lshl_b32 s{sROT}, s{sROT}, 1
        s_xor_b32 s{sROT}, s{sROT}, s{sT2}
        s_lshr_b32 s{sT2}, s{sT1}, 3
        s_lshl_b32 s{sTB}, s{sT0}, 2
        s_add_u32 s{sTB}, s{sTB}, s{sT2}
        s_and_b32 s{sCB}, s{sT1}, 7
        s_lshl_b32 s{sROT2}, s{sT2}, 1
        s_xor_b32 s{sROT2}, s{sROT2}, s{sCB}
        s_mov_b32 s{sBUD}, 0x8000
        """)
        if not c.rot: k(f"s_mov_b32 s{sROT}, 0")
        if not c.rot2: k(f"s_mov_b32 s{sROT2}, 0")
        k(f"""
        s_cmp_lt_u32 s{sWAVE}, 4
        s_cbranch_scc1 L_consumer
        s_cmp_eq_u32 s{sROLE}, 0
        s_cbranch_scc1 L_load0
        s_branch L_load1
        """)

    def mk_srd(self, b, p, nbytes):
        self.k(f"s_mov_b32 s{b}, s{p}\ns_mov_b32 s{b+1}, s{p+1}\ns_mov_b32 s{b+2}, {nbytes}\ns_mov_b32 s{b+3}, 0x20000")

    def tag_from_epoch(self):
        self.k(f"s_mul_i32 s{sTAG}, s{sTAG}, 1664525\ns_add_u32 s{sTAG}, s{sTAG}, 1013904223")

    def loader(self, role):
        k = self.k; c = self.c
        pitch = 3072 if role == 0 else 2752
        vX, vWA, vWB, vW2, vA2, vT = 4, 8, 12, 16, 20, 21
        vST = 3
        k(f"L_load{role}:")
        if c.stamps: k(f"v_mov_b32 v{vST}, 0\nv_mov_b32 v2, 0")
        k(f"""
        s_sub_u32 s{sT2}, s{sWAVE}, 4          ; w
        s_lshl_b32 s{sLW}, s{sT2}, 12
        s_and_b32 s{sW01}, s{sT2}, 1
        ; ---- x voffsets
        v_lshrrev_b32 v{vT}, 3, v1             ; l>>3
        v_lshrrev_b32 v{vT+1}, 4, v1           ; l>>4
        v_and_b32 v{vT+2}, 7, v1
        v_xor_b32 v{vT+2}, v{vT+2}, v{vT+1}
        v_lshlrev_b32 v{vT+2}, 4, v{vT+2}
        v_lshl_add_u32 v{vT+2}, v{vT}, 10, v{vT+2}
        s_lshl_b32 s{sT0}, s{sRB}, 17
        s_lshl_b32 s{sT1}, s{sT2}, 15
        s_add_u32 s{sT0}, s{sT0}, s{sT1}
        v_add_u32 v{vX}, s{sT0}, v{vT+2}
        v_xor_b32 v{vX+1}, 64, v{vX}
        v_add_u32 v{vX+2}, {2*7168}, v{vX}
        v_add_u32 v{vX+3}, {3*7168}, v{vX+1}
        v_add_u32 v{vX+1}, {7168}, v{vX+1}
        v_bfe_u32 v{vT+2}, v1, 2, 2
        v_xor_b32 v{vT+2}, v{vT+2}, v{vT+1}
        v_and_b32 v{vT+3}, 1, v{vT+2}
        v_lshlrev_b32 v{vT+3}, 6, v{vT+3}
        v_and_b32 v{vT}, 3, v1
        v_lshl_add_u32 v{vT+3}, v{vT}, 4, v{vT+3}
        v_lshrrev_b32 v{vT+2}, 1, v{vT+2}      ; half
        s_lshl_b32 s{sT0}, s{sT2}, 4
        v_add_u32 v{vT+1}, s{sT0}, v{vT+1}     ; R (i=0)
        v_mul_u32_u24 v{vT+4}, {pitch}, v{vT+1}
        v_add_u32 v{vT+4}, v{vT+4}, v{vT+3}
        """)
        if role == 0:
            k(f"""
            s_lshl_b32 s{sT0}, s{sJJ}, 7
            s_add_u32 s{sT1}, s{sT0}, 1024
            v_lshl_add_u32 v{vWA}, v{vT+2}, 10, v{vT+4}
            v_add_u32 v{vWA}, s{sT1}, v{vWA}
            """)
        else:
            k(f"""
            s_lshl_b32 s{sT1}, s{sJJ}, 8
            v_lshl_add_u32 v{vWA}, v{vT+2}, 7, v{vT+4}
            v_add_u32 v{vWA}, s{sT1}, v{vWA}
            s_lshl_b32 s{sT0}, s{sJJ}, 7
            s_add_u32 s{sT0}, s{sT0}, 2048
            """)
        for i in (1, 2, 3): k(f"v_add_u32 v{vWA+i}, {i*(4*pitch-1024)}, v{vWA}")
        k("s_waitcnt lgkmcnt(0)")
        if c.stamps: k(f"v_writelane_b32 v{vST}, s{sST}, 0")
        self.mk_srd(sX, pX, 2048*1024)
        self.mk_srd(sW1, pWQ if role == 0 else pW1, 512*pitch)
        bars, sched, slot = self.schedule(role)
        vm = []
        pend = [None]
        def commit(wait):
            if not c.stamps or pend[0] is None: return
            i = pend[0]; pend[0] = None
            if wait: k("s_waitcnt lgkmcnt(0)")
            k(f"v_writelane_b32 v{vST}, s96, {1+i}\nv_writelane_b32 v2, s98, {i}\nv_writelane_b32 v2, s100, {32+i}")
        def issue(it):
            kind, t = it
            s = t - 12
            if kind == "A" and t < 8:
                k(f"s_xor_b32 s{sT1}, s{sROT}, {t}\ns_lshl_b32 s{sT1}, s{sT1}, 7"); v, r, aux = vX, sX, ""
            elif kind == "W" and t < 8:
                k(f"s_xor_b32 s{sT1}, s{sROT}, {t}\ns_mul_i32 s{sT1}, s{sT1}, {64*pitch}"); v, r, aux = vWA, sW1, ""
            elif kind == "W" and t < 12:
                k(f"s_lshr_b32 s{sT1}, s{sROT}, 1\ns_xor_b32 s{sT1}, s{sT1}, {t-8}\ns_mul_i32 s{sT1}, s{sT1}, {128*pitch}"); v, r, aux = vWB, sW1, ""
            elif kind == "W":
                if s < 8: k(f"s_xor_b32 s{sT1}, s{sROT2}, {s}\ns_lshl_b32 s{sT1}, s{sT1}, 17")
                else: k(f"s_mov_b32 s{sT1}, {(s if s < 11 else s-11) << 17}")
                v, r, aux = vW2, (sW2 if s < 11 else sWO), ""
            else:
                self.flag_wait()
                commit(False)
                nxt = [x for x in flagq if x[1] > t]
                if nxt: self.flag_prefetch(nxt[0])
                if s == 11:
                    pass
                if s < 8: k(f"s_xor_b32 s{sT1}, s{sROT2}, {s}\ns_lshl_b32 s{sT1}, s{sT1}, 13")
                else: k(f"s_mov_b32 s{sT1}, {s << 13}")
                v, r, aux = vA2, sWS, "sc1"
            k(f"s_add_u32 m0, s{sLW}, {slot[it]*SLOT}")
            for i in range(4):
                vv = v if v == vA2 else v + i
                k(f"buffer_load_dwordx4 v{vv}, {srd(r)}, s{sT1} offen offset:{i*1024} {aux} lds")
                vm.append(it)
        flagq = [("A", t) for t in range(12, 27)]
        for i, items in enumerate(sched):
            cur = bars[i-1] if i > 0 else -1
            if i == 0:
                for it in items[:2]: issue(it)
                k(f"s_load_dword s{sTAG}, s[{pWS}:{pWS+1}], {WS_EPOCH}")
                k(f"""
                s_and_b32 s{sT1}, s{sROT}, 1
                v_xor_b32 v{vT+5}, s{sT1}, v{vT+2}
                v_mul_u32_u24 v{vT+5}, {64*pitch}, v{vT+5}
                v_add3_u32 v{vWB}, v{vT+5}, v{vT+4}, s{sT0}
                """)
                if role == 1:
                    k(f"""
                    v_add_u32 v{vT+5}, s{sT0}, v{vT+3}
                    v_cmp_le_u32 vcc, 2752, v{vT+5}
                    v_mov_b32 v{vT+5}, 0x80000000
                    v_cndmask_b32 v{vWB}, v{vWB}, v{vT+5}, vcc
                    """)
                for j in (1, 2, 3): k(f"v_add_u32 v{vWB+j}, {j*(4*pitch-1024)}, v{vWB}")
                for it in items[2:]: issue(it)
                k(f"""
                v_lshl_add_u32 v{vW2}, v{vT+1}, 10, v{vT+3}
                v_lshl_add_u32 v{vW2}, v{vT+2}, 16, v{vW2}
                s_lshl_b32 s{sT0}, s{sCB}, 7
                v_add_u32 v{vW2}, s{sT0}, v{vW2}
                """)
                for j in (1, 2, 3): k(f"v_add_u32 v{vW2+j}, {j*(4096-1024)}, v{vW2}")
                k(f"""
                s_lshr_b32 s{sT0}, s{sT2}, 1
                s_lshl_b32 s{sT1}, s{sTB}, 1
                s_add_u32 s{sT0}, s{sT0}, s{sT1}       ; tg
                s_lshl_b32 s{sT1}, s{sT0}, 7
                s_add_u32 s{sT1}, s{sT1}, {WS_FLAGA}
                s_add_u32 s{sFB0}, s{pWS}, s{sT1}
                s_addc_u32 s{sFB1}, s{pWS+1}, 0
                s_mul_i32 s{sT0}, s{sT0}, {A2_TG}
                s_lshl_b32 s{sT1}, s{sW01}, 12
                s_add_u32 s{sT0}, s{sT0}, s{sT1}
                s_add_u32 s{sT0}, s{sT0}, {WS_A2}
                v_lshlrev_b32 v{vA2}, 4, v1
                v_add_u32 v{vA2}, s{sT0}, v{vA2}
                """)
                self.mk_srd(sW2, pW2, 1376*1024)
                self.mk_srd(sWO, pWO, 512*1024)
                self.mk_srd(sWS, pWS, WS_USED)
                if role == 1:
                    self.mk_srd(sGW, pGW, 1024)
                    k(f"""
                    s_lshl_b32 s{sT0}, s{sROT}, 3
                    v_xor_b32 v{vT+5}, s{sT0}, v1
                    v_lshlrev_b32 v{vT+5}, 4, v{vT+5}
                    s_mov_b32 m0, {M_GW}
                    buffer_load_dwordx4 v{vT+5}, {srd(sGW)}, 0 offen lds
                    """)
                    vm.append(("W", 8))
                k("s_waitcnt lgkmcnt(0)")
                self.tag_from_epoch()
            else:
                if cur == c.firstA2 - 1 or (c.firstA2 == 9 and role == 0 and cur == "8x"):
                    commit(True)
                    self.flag_prefetch(flagq[0])
                gathered = False
                if role == 0 and cur == c.G:
                    self.kv_gather_issue(vm)
                    gathered = True
                for it in items: issue(it)
                if gathered: self.kv_gather_finish(vm)
                if cur == 22:
                    self.flag_wait_now(14)
            if i < len(bars):
                nb = bars[i]
                commit(True)
                if c.stamps: k("s_memrealtime s[98:99]")
                if nb != "8x":
                    last = max([j for j, x in enumerate(vm) if x != "X" and x[1] == nb], default=-1)
                    if last >= 0:
                        k(f"s_waitcnt vmcnt({len(vm) - 1 - last})")
                if c.stamps: k("s_memrealtime s[100:101]")
                k("s_barrier")
                if c.stamps: k("s_memrealtime s[96:97]"); pend[0] = i
        commit(True)
        self.stamp_flush(vST, vT, 1)
        if c.stamps: k(f"v_add_u32 v{vT}, {1<<20}, v{vT}\nglobal_store_dword v{vT}, v2, s[{pWS}:{pWS+1}]")
        k("s_endpgm")
        self.sched_info = getattr(self, "sched_info", {})
        self.sched_info[role] = (bars, sched, slot)

    def flag_off(self, it, dst):
        k = self.k
        s = it[1] - 12
        if s < 8: k(f"s_xor_b32 s{dst}, s{sROT2}, {s}\ns_lshl_b32 s{dst}, s{dst}, 2")
        else:
            base = 8 + 2*(s-8) if s < 11 else 16 + 2*(s-11)
            k(f"s_add_u32 s{dst}, s{sW01}, {base}\ns_lshl_b32 s{dst}, s{dst}, 2")
    def flag_prefetch(self, it):
        self.flag_off(it, sEXS)
        self.k(f"s_load_dword s{sFLG}, s[{sFB0}:{sFB1}], s{sEXS} glc")
    def flag_wait(self):
        k = self.k
        l0, l1 = k.label("FW"), k.label("FD")
        k(f"""
        {l0}:
        s_waitcnt lgkmcnt(0)
        s_cmp_eq_u32 s{sFLG}, s{sTAG}
        s_cbranch_scc1 {l1}
        s_load_dword s{sFLG}, s[{sFB0}:{sFB1}], s{sEXS} glc
        s_sub_u32 s{sBUD}, s{sBUD}, 1
        s_cbranch_scc0 {l0}
        s_mov_b32 s{sBUD}, 0
        s_waitcnt lgkmcnt(0)
        {l1}:
        """)
    def flag_wait_now(self, idx):
        k = self.k
        l0, l1 = k.label("FW"), k.label("FD")
        k(f"""
        {l0}:
        s_load_dword s{sT0}, s[{sFB0}:{sFB1}], {idx*4} glc
        s_waitcnt lgkmcnt(0)
        s_cmp_eq_u32 s{sT0}, s{sTAG}
        s_cbranch_scc1 {l1}
        s_sub_u32 s{sBUD}, s{sBUD}, 1
        s_cbranch_scc0 {l0}
        s_mov_b32 s{sBUD}, 0
        {l1}:
        """)

    def kv_gather_issue(self, vm):
        k = self.k
        l0, l1 = k.label("KW"), k.label("KD")
        vK = 32
        k(f"""
        s_sub_u32 s{sT2}, s{sWAVE}, 4
        s_lshl_b32 s{sT0}, s{sJJ}, 2
        s_add_u32 s{sT0}, s{sT0}, s{sT2}
        s_lshl_b32 s{sT0}, s{sT0}, 7
        s_add_u32 s{sT0}, s{sT0}, {WS_FLAGK}
        {l0}:
        s_load_dwordx16 s[{sKF}:{sKF+15}], s[{pWS}:{pWS+1}], s{sT0} glc
        s_waitcnt lgkmcnt(0)
        s_xor_b32 s{sT1}, s{sKF}, s{sTAG}
        """)
        for i in range(1, 16):
            k(f"s_xor_b32 s{sKF+i}, s{sKF+i}, s{sTAG}\ns_or_b32 s{sT1}, s{sT1}, s{sKF+i}")
        k(f"""
        s_cbranch_scc0 {l1}
        s_sub_u32 s{sBUD}, s{sBUD}, 1
        s_cbranch_scc0 {l0}
        s_mov_b32 s{sBUD}, 0
        {l1}:
        s_mul_i32 s{sT0}, s{sJJ}, {16*KVP_STRIDE}
        s_add_u32 s{sT0}, s{sT0}, {WS_KVP}
        s_lshl_b32 s{sT1}, s{sT2}, 10
        v_lshlrev_b32 v28, 4, v1
        v_add_u32 v28, s{sT1}, v28
        v_lshlrev_b32 v29, 2, v1
        v_add_u32 v29, 4096, v29
        s_cmp_eq_u32 s{sT2}, 0
        s_cselect_b32 s{sT1}, 0, 0x80000000
        v_add_u32 v29, s{sT1}, v29
        """)
        for i in range(16):
            k(f"buffer_load_dwordx4 {vr(vK+4*i)}, v28, {srd(sWS)}, s{sT0} offen sc1")
            k(f"buffer_load_dword v{96+i}, v29, {srd(sWS)}, s{sT0} offen sc1")
            if i < 15: k(f"s_add_u32 s{sT0}, s{sT0}, {KVP_STRIDE}")
            vm.append("X"); vm.append("X")
        self.kv_last = len(vm) - 1
    def kv_gather_finish(self, vm):
        k = self.k
        vK = 32
        k(f"s_waitcnt vmcnt({len(vm) - 1 - self.kv_last})")
        st = 1
        while st < 16:
            for i in range(0, 16, 2*st):
                for e in range(4): k(f"v_add_f32 v{vK+4*i+e}, v{vK+4*i+e}, v{vK+4*(i+st)+e}")
                k(f"v_add_f32 v{96+i}, v{96+i}, v{96+i+st}")
            st *= 2
        l1 = k.label("KZ")
        k(f"""
        v_cvt_pk_bf16_f32 v{vK}, v{vK}, v{vK+1}
        v_cvt_pk_bf16_f32 v{vK+1}, v{vK+2}, v{vK+3}
        v_cvt_pk_bf16_f32 v96, v96, v96
        s_sub_u32 s{sT2}, s{sWAVE}, 4
        s_lshr_b32 s{sT0}, s{sT2}, 1
        s_lshl_b32 s{sT0}, s{sT0}, 10
        s_lshl_b32 s{sT1}, s{sW01}, 3
        s_add_u32 s{sT0}, s{sT0}, s{sT1}
        s_add_u32 s{sT0}, s{sT0}, {M_KVF}
        v_lshlrev_b32 v28, 4, v1
        v_add_u32 v28, s{sT0}, v28
        ds_write_b64 v28, v[{vK}:{vK+1}]
        s_cmp_lg_u32 s{sT2}, 0
        s_cbranch_scc1 {l1}
        v_lshrrev_b32 v28, 4, v1
        v_lshlrev_b32 v28, 5, v28
        v_bfe_u32 v29, v1, 2, 1
        v_lshl_add_u32 v28, v29, 4, v28
        v_bfe_u32 v29, v1, 3, 1
        v_lshl_add_u32 v28, v29, 3, v28
        v_and_b32 v29, 3, v1
        v_lshl_add_u32 v28, v29, 1, v28
        v_add_u32 v28, {M_ZF}, v28
        ds_write_b16 v28, v96
        {l1}:
        s_waitcnt lgkmcnt(0)
        """)

    def consumer_common(self):
        k = self.k; c = self.c
        k("L_consumer:")
        if c.prio: k("s_setprio 2")
        if c.stamps: k("v_mov_b32 v39, 0")
        k(f"""
        ; x read addresses v2..v5 : wave*4096 + t*128 + ((2ks+kh) ^ ((t>>1)&7))*16
        v_and_b32 v10, 31, v1                  ; t
        v_lshrrev_b32 v11, 5, v1               ; kh
        v_bfe_u32 v2, v1, 1, 3
        v_xor_b32 v2, v2, v11
        v_lshlrev_b32 v2, 4, v2
        v_lshl_add_u32 v2, v10, 7, v2
        s_lshl_b32 s{sT0}, s{sWAVE}, 12
        v_add_u32 v2, s{sT0}, v2
        v_xor_b32 v3, 32, v2
        v_xor_b32 v4, 64, v2
        v_xor_b32 v5, 96, v2
        v_bfe_u32 v36, v1, 2, 2                ; r
        v_and_b32 v37, 3, v1
        v_lshlrev_b32 v37, 3, v37
        v_bfe_u32 v38, v1, 4, 1
        v_lshl_add_u32 v37, v38, 5, v37
        v_mul_u32_u24 v38, 320, v36            ; r*256 + r*64
        v_add_u32 v37, v37, v38
        v_lshl_add_u32 v6, v11, 11, v37
        v_xor_b32 v7, 64, v6
        v_xor_b32 v8, 128, v6
        v_xor_b32 v9, 192, v6
        s_and_b32 s{sT0}, s{sWAVE}, 1
        s_lshl_b32 s{sT0}, s{sT0}, 6
        v_lshl_add_u32 v37, v11, 10, v37
        v_xor_b32 v37, s{sT0}, v37
        s_lshl_b32 s{sT0}, s{sRB}, 2
        s_add_u32 s{sT0}, s{sT0}, s{sWAVE}     ; tg
        s_lshl_b32 s{sFLG}, s{sT0}, 7          ; tg*128
        s_mul_i32 s{sT0}, s{sT0}, {A2_TG}
        s_add_u32 s{sT0}, s{sT0}, {WS_A2}
        v_lshlrev_b32 v10, 4, v1
        v_add_u32 v10, s{sT0}, v10
        s_mov_b32 s{sMASK16}, 0xffff0000
        s_mov_b32 s{sMASK16+1}, 0xffff0000
        s_waitcnt lgkmcnt(0)
        s_load_dword s{sTAG}, s[{pWS}:{pWS+1}], {WS_EPOCH}
        """)
        if c.stamps: k(f"v_writelane_b32 v39, s{sST}, 0")
        self.mk_srd(sWS, pWS, WS_USED)
        self.mk_srd(sOUT, pOUT, 2048*1024)
        k("s_waitcnt lgkmcnt(0)")
        self.tag_from_epoch()
        k(f"""
        s_cmp_eq_u32 s{sROLE}, 0
        s_cbranch_scc0 L_cons1
        """)

    class DS:
        def __init__(self, k):
            self.k = k; self.n = 0; self.done = 0; self.base = {}
        def addr(self, v, a):
            b = self.base.get(v, 0)
            if not (0 <= a - b <= 65535):
                nb = a & ~0x3fff
                if nb + 65535 > LDS_BYTES + 16384: nb = min(nb, 98304)
                self.k(f"v_add_u32 v{v}, {(nb - b) & 0xffffffff}, v{v}")
                self.base[v] = b = nb
            return a - b
        def op(self, text):
            self.k(text); self.n += 1; return self.n
        def read128(self, dst, v, a):
            o = self.addr(v, a); return self.op(f"ds_read_b128 {vr(dst)}, v{v} offset:{o}")
        def tr(self, dst, v, a):
            o = self.addr(v, a); return self.op(f"ds_read_b64_tr_b16 v[{dst}:{dst+1}], v{v} offset:{o}")
        def wait(self, tok):
            if tok > self.done:
                assert self.n - tok <= 15
                self.k(f"s_waitcnt lgkmcnt({self.n - tok})"); self.done = tok
        def waitall(self): self.wait(self.n)

    def publish(self, flag_soff_expr, epoch_check=False):
        k = self.k
        k("s_waitcnt vmcnt(0)")
        k(flag_soff_expr)
        k(f"""
        v_mov_b32 v36, s{sTAG}
        v_mov_b32 v38, 0
        s_mov_b64 exec, 1
        buffer_store_dword v36, v38, {srd(sWS)}, s{sT0} offen sc1
        """)
        if epoch_check:
            k(f"""
            v_cmp_eq_u32 vcc, 255, v11
            s_and_b64 exec, exec, vcc
            buffer_store_dword v36, v38, {srd(sWS)}, 0 offen sc1
            """)
        k("s_mov_b64 exec, -1")

    def phi(self, src, dst):
        k = self.k
        k(f"s_mov_b32 s{sT1}, 0x3fb8aa3b\ns_mov_b32 s{sT2}, 0x358637bd")
        for r in range(0, 16, 2):
            k(f"""
            v_mul_f32 v36, s{sT1}, v{src+r}
            v_mul_f32 v38, s{sT1}, v{src+r+1}
            v_exp_f32_e64 v36, v36 clamp
            v_exp_f32_e64 v38, v38 clamp
            v_max_f32 v{src+r}, s{sT2}, v{src+r}
            v_max_f32 v{src+r+1}, s{sT2}, v{src+r+1}
            v_add_f32 v36, v36, v{src+r}
            v_add_f32 v38, v38, v{src+r+1}
            v_cvt_pk_bf16_f32 v{dst+r//2}, v36, v38
            """)

    def relu_store(self, src, kf_soff, off):
        k = self.k
        for r in range(0, 16, 2):
            k(f"v_cvt_pk_bf16_f32 v{src+r//2}, v{src+r}, v{src+r+1}")
        for r in range(8):
            k(f"v_pk_max_i16 v{src+r}, v{src+r}, 0")
        for f in range(2):
            k(f"buffer_store_dwordx4 {vr(src+4*f)}, v10, {srd(sWS)}, s{kf_soff} offen offset:{off+1024*f} sc1")

    def consumer(self, role):
        k = self.k; c = self.c
        bars, sched, slot = self.sched_info[role]
        ds = Gen.DS(k)
        vACC, vXF, vWB = 64, 128, 12
        if role == 1: k("L_cons1:")
        nbar = [0]
        def barrier(name):
            assert bars[nbar[0]] == name, (bars[nbar[0]], name)
            k("s_barrier"); nbar[0] += 1
            if c.stamps == 2:
                self.stamp(nbar[0], 39); ds.done = ds.n
        M = []
        for t in range(8):
            for ks in range(4):
                for ct in range(4): M.append(dict(t=t, ks=ks, q=ct, xf=4*t+ks, acc=vACC+16*ct, first=(t == 0 and ks == 0), tr=(role == 1)))
        for u in range(4):
            for hf in range(2):
                for ks in range(4):
                    for ct in range(2): M.append(dict(t=8+u, ks=ks, q=2*hf+ct, xf=(2*u+hf)*4+ks, acc=vACC+16*ct, first=(u == 0 and hf == 0 and ks == 0), tr=True))
        xtok = {}
        seen = set()
        def reads(m):
            e = M[m]; t = e["t"]
            if t not in seen:
                seen.add(t); barrier(t)
                if t == 0:
                    if c.dbgtime: k("s_memrealtime s[100:101]\ns_waitcnt lgkmcnt(0)")
                    l = k.label("AT")
                    k(f"""
                    v_mov_b32 v11, 0
                    s_cmp_lg_u32 s{sWAVE}, 0
                    s_cbranch_scc1 {l}
                    v_mov_b32 v36, 1
                    v_mov_b32 v38, 0
                    s_mov_b64 exec, 1
                    global_atomic_add v11, v38, v36, s[{pDBG}:{pDBG+1}] sc0 sc1
                    s_mov_b64 exec, -1
                    {l}:
                    """)
            if t < 8 and e["ks"] == 0:
                ks = e["q"]
                xtok[4*t+ks] = ds.read128(vXF + 4*(4*t+ks), 2+ks, slot[("A", t)]*SLOT)
            b = vWB + 4*(m % c.NB)
            a = slot[("W", t)]*SLOT + e["ks"]*4096
            ds.tr(b, 6+e["q"], a); e["tok"] = ds.tr(b+2, 6+e["q"], a + 1024)
        def mfma(m):
            e = M[m]
            ds.wait(max(e["tok"], xtok[e["xf"]]))
            b = vWB + 4*(m % c.NB); x = vXF + 4*e["xf"]
            A, B = (b, x) if e["tr"] else (x, b)
            k(f"v_mfma_f32_32x32x16_bf16 {vr(e['acc'],16)}, {vr(A)}, {vr(B)}, {'0' if e['first'] else vr(e['acc'],16)}")
        for m in range(c.L): reads(m)
        skipB = k.label("SKB"); joinB = k.label("JB")
        for m in range(len(M)):
            if m == 128:
                if role == 1:
                    k(f"s_lshl_b32 s{sT2}, s{sJJ}, 13\ns_add_u32 s{sT1}, s{sT2}, 4096")
                    for ct in range(4):
                        self.relu_store(vACC+16*ct, sT2 if ct < 2 else sT1, (ct & 1)*2048)
                    k(f"s_cmp_ge_u32 s{sJJ}, 6\ns_cbranch_scc1 {skipB}")
                    saved = (ds.n, ds.done, dict(ds.base), nbar[0])
                else:
                    self.epiA_qkv(ds, slot, barrier)
            if m + c.L < len(M): reads(m + c.L)
            mfma(m)
            e = M[m]
            pub = c.pub_hA if role == 1 else c.pub_kv
            if m == 128 + (pub[0]-8)*16 + pub[1]:
                if role == 1:
                    self.publish(f"s_lshl_b32 s{sT0}, s{sJJ}, 2\ns_add_u32 s{sT0}, s{sT0}, s{sFLG}\ns_add_u32 s{sT0}, s{sT0}, {WS_FLAGA}", True)
                else:
                    self.publish(f"""s_lshl_b32 s{sT0}, s{sJJ}, 2
                    s_add_u32 s{sT0}, s{sT0}, s{sWAVE}
                    s_lshl_b32 s{sT0}, s{sT0}, 5
                    s_add_u32 s{sT0}, s{sT0}, s{sRB}
                    s_lshl_b32 s{sT0}, s{sT0}, 2
                    s_add_u32 s{sT0}, s{sT0}, {WS_FLAGK}""", True)
        if role == 1:
            k(f"s_lshl_b32 s{sT2}, s{sJJ}, 12\ns_add_u32 s{sT2}, s{sT2}, {64*1024}")
            for ct in range(2): self.relu_store(vACC+16*ct, sT2, ct*2048)
            k(f"s_branch {joinB}")
            endstate = (ds.n, ds.done, dict(ds.base), nbar[0])
            k(f"{skipB}:")
            ds.n, ds.done, ds.base, nbar[0] = saved
            ds.waitall()
            noG = k.label("NG")
            k(f"s_cmp_lg_u32 s{sJJ}, 6\ns_cbranch_scc1 {noG}")
            k(f"v_lshrrev_b32 v36, 5, v1\nv_lshlrev_b32 v36, 4, v36\nv_add_u32 v36, {M_GW}, v36")
            toks = {}
            for f in range(32 + 4):
                if f < 32: toks[f] = ds.op(f"ds_read_b128 {vr(vWB+4*(f%6))}, v36 offset:{32*f}")
                if f >= 4:
                    g = f - 4
                    ds.wait(toks[g])
                    k(f"v_mfma_f32_32x32x16_bf16 {vr(vACC,16)}, {vr(vWB+4*(g%6))}, {vr(vXF+4*g)}, {'0' if g == 0 else vr(vACC,16)}")
            k(f"""
            v_mul_f32 v36, 0xbfb8aa3b, v{vACC}
            v_exp_f32 v36, v36
            v_add_f32 v36, 1.0, v36
            v_rcp_f32 v36, v36
            v_and_b32 v38, 31, v1
            v_lshlrev_b32 v38, 2, v38
            s_add_u32 s{sT0}, s{sFLG}, {WS_G}
            buffer_store_dword v36, v38, {srd(sWS)}, s{sT0} offen sc1
            {noG}:
            """)
            while bars[nbar[0]] != c.pub_hA[0] + 1: barrier(bars[nbar[0]])
            self.publish(f"s_lshl_b32 s{sT0}, s{sJJ}, 2\ns_add_u32 s{sT0}, s{sT0}, s{sFLG}\ns_add_u32 s{sT0}, s{sT0}, {WS_FLAGA}", True)
            while bars[nbar[0]] != 12: barrier(bars[nbar[0]])
            assert nbar[0] == endstate[3]
            k(f"{joinB}:\ns_nop 7")
            ds.n = ds.done = 0
        else:
            for ct in range(2): self.phi(vACC+16*ct, vACC+8*ct)
        k(f"""
        s_lshr_b32 s{sT0}, s{sWAVE}, 1
        s_lshl_b32 s{sT0}, s{sT0}, 13
        v_lshlrev_b32 v2, 4, v1
        v_add_u32 v2, s{sT0}, v2
        v_mov_b32 v3, v37
        v_xor_b32 v4, 128, v37
        """)
        ds.base = {}
        vB, vA = 96, 112
        fA, fW = 128, 160
        tok = {}
        def rd2(t, kf):
            a = slot[("A", t)]*SLOT + kf*1024
            w = slot[("W", t)]*SLOT + (kf & 3)*4096
            ds.read128(fA+4*kf, 2, a)
            ds.tr(fW+4*kf, 3+(kf >> 2), w); tok[(t, kf)] = ds.tr(fW+4*kf+2, 3+(kf >> 2), w + 2048)
        def mf2(t, kf):
            ds.wait(tok[(t, kf)])
            acc = vB if t < 23 else vA
            first = kf == 0 and t in (12, 23)
            k(f"v_mfma_f32_32x32x16_bf16 {vr(acc,16)}, {vr(fW+4*kf)}, {vr(fA+4*kf)}, {'0' if first else vr(acc,16)}")
        def extras(t):
            if role == 1 and t == c.pub_hB:
                self.publish(f"s_lshl_b32 s{sT0}, s{sJJ}, 2\ns_add_u32 s{sT0}, s{sT0}, s{sFLG}\ns_add_u32 s{sT0}, s{sT0}, {WS_FLAGA+32}")
            if role == 0 and t == c.G + 1: self.o_compute(ds)
            if role == 0 and t == c.pub_o:
                self.publish(f"s_lshl_b32 s{sT0}, s{sJJ}, 2\ns_add_u32 s{sT0}, s{sT0}, s{sFLG}\ns_add_u32 s{sT0}, s{sT0}, {WS_FLAGA+64}")
            if t == 23:
                k(f"""
                s_lshl_b32 s{sT0}, s{sTB}, 1
                s_lshr_b32 s{sT1}, s{sWAVE}, 1
                s_add_u32 s{sT0}, s{sT0}, s{sT1}
                s_lshl_b32 s{sT1}, s{sT0}, 7
                s_add_u32 s{sT1}, s{sT1}, {WS_G}
                v_and_b32 v5, 31, v1
                v_lshlrev_b32 v6, 2, v5
                buffer_load_dword v7, v6, {srd(sWS)}, s{sT1} offen sc1
                s_lshl_b32 s{sT0}, s{sT0}, 15
                s_lshl_b32 s{sT1}, s{sCB}, 7
                s_add_u32 s{sT0}, s{sT0}, s{sT1}
                s_and_b32 s{sT1}, s{sWAVE}, 1
                s_lshl_b32 s{sT1}, s{sT1}, 6
                s_add_u32 s{sT0}, s{sT0}, s{sT1}
                v_lshrrev_b32 v6, 5, v1
                v_lshlrev_b32 v6, 4, v6
                v_lshl_add_u32 v6, v5, 10, v6
                v_add_u32 v6, s{sT0}, v6
                """)
        ds.waitall()
        barrier(12)
        for kf in range(4): rd2(12, kf)
        extras(12)
        for t in range(12, 27):
            for kf in range(8):
                if kf == 5 and t < 26:
                    ds.waitall()
                    barrier(t+1)
                mf2(t, kf)
                if kf < 4: rd2(t, kf+4)
                elif kf >= 5 and t < 26:
                    rd2(t+1, kf-5)
                    if kf == 7:
                        rd2(t+1, 3)
                        extras(t+1)
        assert nbar[0] == len(bars)
        k("s_waitcnt vmcnt(0)")
        for r in range(16):
            k(f"v_sub_f32 v{vA+r}, v{vA+r}, v{vB+r}")
        for r in range(16):
            k(f"v_fma_f32 v{vA+r}, v{vA+r}, v7, v{vB+r}")
        for r in range(8):
            k(f"v_cvt_pk_bf16_f32 v{vB+r}, v{vA+2*r}, v{vA+2*r+1}")
        for p in range(2):
            k(f"v_permlane32_swap_b32 v{vB+4*p}, v{vB+4*p+2}\nv_permlane32_swap_b32 v{vB+4*p+1}, v{vB+4*p+3}")
        for p in range(2):
            k(f"buffer_store_dwordx4 {vr(vB+4*p)}, v6, {srd(sOUT)}, 0 offen offset:{32*p}")
        if c.dbgtime:
            k(f"""
            s_waitcnt vmcnt(0)
            s_memrealtime s[4:5]
            s_memtime s[6:7]
            s_waitcnt lgkmcnt(0)
            s_not_b32 s{sT0}, s96
            s_sub_u32 s{sT1}, s4, s96
            s_sub_u32 s{sT2}, s6, s98
            s_sub_u32 s100, s100, s96
            s_mov_b64 exec, 1
            v_mov_b32 v38, 0
            v_mov_b32 v2, s{sT0}
            v_mov_b32 v3, s96
            v_mov_b32 v4, s4
            v_mov_b32 v5, s{sT1}
            v_mov_b32 v6, s{sT2}
            v_mov_b32 v7, s100
            global_atomic_umax v38, v2, s[{pDBG}:{pDBG+1}] offset:4 sc1
            global_atomic_umax v38, v3, s[{pDBG}:{pDBG+1}] offset:8 sc1
            global_atomic_umax v38, v4, s[{pDBG}:{pDBG+1}] offset:12 sc1
            global_atomic_add v38, v5, s[{pDBG}:{pDBG+1}] offset:16 sc1
            global_atomic_add v38, v6, s[{pDBG}:{pDBG+1}] offset:20 sc1
            global_atomic_add v38, v7, s[{pDBG}:{pDBG+1}] offset:24 sc1
            """)
        if c.stamps:
            k("s_waitcnt vmcnt(0)")
            self.stamp(40, 39)
            self.stamp_flush(39, 36, 1)
        k("s_endpgm")

    def epiA_qkv(self, ds, slot, barrier):
        k = self.k
        self.phi(64, 64)
        self.phi(80, 72)
        for ct in (2, 3):
            for r in range(0, 16, 2):
                k(f"v_cvt_pk_bf16_f32 v{64+8*ct+r//2}, v{64+16*ct+r}, v{64+16*ct+r+1}")
        k(f"""
        v_and_b32 v36, 4, v1
        v_cmp_eq_u32 vcc, 0, v36
        v_mov_b32 v36, 0x3f803f80
        v_cndmask_b32 v56, 0, v36, vcc
        v_xor_b32 v60, v56, v36
        """)
        for i in (1, 2, 3): k(f"v_mov_b32 v{56+i}, v56\nv_mov_b32 v{60+i}, v60")
        for T in range(2):
            for f in range(2):
                k(f"v_mfma_f32_32x32x16_bf16 {vr(96+16*T,16)}, {vr(64+8*T+4*f)}, {vr(80+8*T+4*f)}, {'0' if f == 0 else vr(96+16*T,16)}")
        for T in range(2):
            for f in range(2):
                k(f"v_mfma_f32_32x32x16_bf16 {vr(40,16)}, {vr(56+4*T)}, {vr(64+8*T+4*f)}, {'0' if (T == 0 and f == 0) else vr(40,16)}")
        S = slot["S"]*SLOT
        k(f"""
        s_lshl_b32 s{sT0}, s{sWAVE}, 12
        s_add_u32 s{sT0}, s{sT0}, {S}
        v_lshlrev_b32 v36, 4, v1
        v_add_u32 v38, s{sT0}, v36
        """)
        for T in range(2):
            for r in range(8):
                k(f"v_cndmask_b32 v{96+16*T+r}, v{96+16*T+r}, v{96+16*T+8+r}, s[{sMASK16}:{sMASK16+1}]")
            for q in range(2):
                ds.op(f"ds_write_b128 v38, {vr(96+16*T+4*q)} offset:{(2*T+q)*1024}")
        k(f"""
        s_lshl_b32 s{sT0}, s{sWAVE}, 8
        s_add_u32 s{sT0}, s{sT0}, {M_ZST}
        v_lshlrev_b32 v56, 2, v1
        v_add_u32 v57, s{sT0}, v56
        """)
        ds.op(f"ds_write_b32 v57, v40")
        k(f"""
        s_lshl_b32 s{sT0}, s{sWAVE}, 10
        s_add_u32 s{sT1}, s{sT0}, {S}
        v_add_u32 v38, s{sT1}, v36
        v_add_u32 v57, {M_ZST}, v56
        v_add_u32 v36, s{sT0}, v36
        """)
        ds.waitall()
        barrier("8x")
        for w in range(4): ds.op(f"ds_read_b128 {vr(96+4*w)}, v38 offset:{w*4096}")
        for w in range(4): ds.op(f"ds_read_b32 v{112+w}, v57 offset:{w*256}")
        k(f"""
        s_lshl_b32 s{sT0}, s{sJJ}, 4
        s_add_u32 s{sT0}, s{sT0}, s{sRB}
        s_mul_i32 s{sT0}, s{sT0}, {KVP_STRIDE}
        s_add_u32 s{sT0}, s{sT0}, {WS_KVP}
        s_cmp_eq_u32 s{sWAVE}, 0
        s_cselect_b32 s{sT1}, 0, 0x80000000
        s_add_u32 s{sT1}, s{sT1}, 4096
        v_add_u32 v56, s{sT1}, v56
        """)
        ds.waitall()
        for e in range(4):
            k(f"v_add_f32 v{96+e}, v{96+e}, v{100+e}\nv_add_f32 v{104+e}, v{104+e}, v{108+e}")
        k("v_add_f32 v112, v112, v113\nv_add_f32 v114, v114, v115")
        for e in range(4): k(f"v_add_f32 v{96+e}, v{96+e}, v{104+e}")
        k("v_add_f32 v112, v112, v114")
        k(f"buffer_store_dwordx4 {vr(96)}, v36, {srd(sWS)}, s{sT0} offen sc1")
        k(f"buffer_store_dword v112, v56, {srd(sWS)}, s{sT0} offen sc1")

    def o_compute(self, ds):
        k = self.k
        k(f"""
        v_lshlrev_b32 v36, 4, v1
        v_add_u32 v36, {M_KVF}, v36
        v_lshrrev_b32 v38, 5, v1
        v_lshlrev_b32 v38, 4, v38
        v_add_u32 v38, {M_ZF}, v38
        """)
        toks = []
        for T in range(2):
            for f in range(2):
                k(f"v_add_u32 v5, {1024*T}, v36\nv_add_u32 v6, {64*T+32*f}, v38")
                if f == 0: k(f"v_cndmask_b32 v5, v5, v6, s[{sMASK16}:{sMASK16+1}]")
                else: k(f"v_cndmask_b32 v5, v6, v5, s[{sMASK16}:{sMASK16+1}]")
                while ds.n - ds.done >= 15: ds.wait(ds.done + 1)
                toks.append(ds.op(f"ds_read_b128 {vr(12+4*(2*T+f))}, v5"))
        k(f"s_lshl_b32 s{sT0}, s{sJJ}, 12\ns_add_u32 s{sT0}, s{sT0}, {88*1024}\ns_mov_b32 s{sT1}, 0x358637bd")
        D = [80, 40, 192, 208]
        for h in range(4):
            ds.wait(toks[h])
            k(f"v_mfma_f32_32x32x16_bf16 {vr(D[h],16)}, {vr(12+4*h)}, {vr(64+4*h)}, 0")
        for h in range(4):
            f = h & 1
            num = D[h] + 8*f; den = D[h] + 8*(1-f)
            k(f"v_add_f32 v{den}, s{sT1}, v{den}\nv_rcp_f32 v{den}, v{den}")
            for r in range(8): k(f"v_mul_f32 v{num+r}, v{num+r}, v{den}")
            for r in range(4): k(f"v_cvt_pk_bf16_f32 v{num+r}, v{num+2*r}, v{num+2*r+1}")
            k(f"buffer_store_dwordx4 {vr(num)}, v10, {srd(sWS)}, s{sT0} offen offset:{1024*h} sc1")

    def build(self, path):
        self.prologue()
        self.loader(0); self.loader(1)
        self.consumer_common()
        self.consumer(0); self.consumer(1)
        self.k("L_end:\ns_endpgm")
        self.k.lines, n = hazard.pad(self.k.lines)
        emit(path, [self.k])
        return n

def make(path, **kw):
    c = Cfg()
    c.pub_hB = 14; c.pub_o = 16
    c.cap = {(0, 8): 3, (1, 8): 3, (0, 11): 3, (1, 11): 3}
    for a, b in kw.items(): setattr(c, a, b)
    g = Gen(c)
    n = g.build(path)
    return g, n

if __name__ == "__main__":
    g, n = make("k1.s")
    for role in (0, 1):
        bars, sched, slot = g.sched_info[role]
        print("role", role)
        for i, it in enumerate(sched):
            print("  after", bars[i-1] if i else "start", [f"{a}{t}@{slot[(a,t)]}" for a, t in it])
    print("nops added", n, "lines", len(g.k.lines))
    make("k1s.s", stamps=True)
    make("k1d.s", dbgtime=True)
```

```python
import sys, re
from asmlib import *
import gen1
def build(path, order):
    g, n = gen1.make("x.s")
    main = g.k
    e = K("empty_kernel", 256, 64, 0, vgpr=8, sgpr=16); e("s_endpgm")
    t = K("touch_kernel", 256, 256, 0, vgpr=32, sgpr=64)
    t(f"""
    s_cmp_ge_u32 s2, 256
    s_cbranch_scc1 L_tend
    s_load_dwordx16 s[36:51], s[0:1], 0
    s_load_dwordx4 s[52:55], s[0:1], 64
    v_lshlrev_b32 v1, 16, v0
    s_mov_b32 s11, 0x20000
    s_waitcnt lgkmcnt(0)
    """)
    for i, (p, nb) in enumerate(((36, 2048*1024), (38, 512*3072), (40, 512*1024), (44, 512*2752), (46, 1376*1024), (48, 1024), (50, 2048*1024), (54, gen1.WS_USED))):
        t(f"s_mov_b32 s8, s{p}\ns_mov_b32 s9, s{p+1}\ns_mov_b32 s10, {nb}\nbuffer_load_dword v{2+i}, v1, s[8:11], 0 offen")
    t("s_waitcnt vmcnt(0)\nL_tend:\ns_endpgm")
    d = dict(m=main, e=e, t=t)
    ks = []
    for o in order:
        if d[o] not in ks: ks.append(d[o])
    emit(path, ks, [d[o] for o in order])
build("l_em.s", "em"); build("l_me.s", "me"); build("l_mm.s", "mm"); build("l_tm.s", "tm"); build("l_eeem.s", "eeem")
```

```python
import sys, importlib
from asmlib import *
AMP = 10
def build(genmod, path, a, b, wave_a=0, wave_b=0, mode="maxmin", **kw):
    g, n = genmod.make("x.s", stamps=True, **kw)
    main = g.k
    t = K("probe_kernel", 1, 64, 0, vgpr=32, sgpr=64)
    t(f"""
    s_cmp_ge_u32 s2, 1
    s_cbranch_scc1 L_pend
    s_load_dwordx2 s[4:5], s[0:1], 72
    v_lshlrev_b32 v1, 11, v0
    v_add_u32 v1, {genmod.WS_STAMP}, v1
    s_waitcnt lgkmcnt(0)
    """)
    for i in range(4):
        t(f"global_load_dword v{2+i}, v1, s[4:5] offset:{wave_a*256+a*4}\nglobal_load_dword v{6+i}, v1, s[4:5] offset:{wave_b*256+b*4}\nv_add_u32 v1, {64*2048}, v1")
    t("s_waitcnt vmcnt(0)")
    if mode == "maxmin":
        t("""
        v_min_u32 v2, v2, v3
        v_min_u32 v4, v4, v5
        v_min_u32 v2, v2, v4
        v_max_u32 v6, v6, v7
        v_max_u32 v8, v8, v9
        v_max_u32 v6, v6, v8
        s_mov_b32 s10, -1
        s_mov_b32 s11, 0
        s_mov_b32 s12, 0
        L_pr:
        s_nop 4
        v_readlane_b32 s13, v2, s12
        v_readlane_b32 s14, v6, s12
        s_nop 4
        s_min_u32 s10, s10, s13
        s_max_u32 s11, s11, s14
        s_add_u32 s12, s12, 1
        s_cmp_lt_u32 s12, 64
        s_cbranch_scc1 L_pr
        s_sub_u32 s10, s11, s10
        """)
    elif mode == "mean":
        t("""
        v_sub_u32 v2, v6, v2
        v_sub_u32 v3, v7, v3
        v_sub_u32 v4, v8, v4
        v_sub_u32 v5, v9, v5
        v_add_u32 v2, v2, v3
        v_add3_u32 v2, v2, v4, v5
        s_mov_b32 s10, 0
        s_mov_b32 s12, 0
        L_pr:
        s_nop 4
        v_readlane_b32 s13, v2, s12
        s_nop 4
        s_add_u32 s10, s10, s13
        s_add_u32 s12, s12, 1
        s_cmp_lt_u32 s12, 64
        s_cbranch_scc1 L_pr
        s_lshr_b32 s10, s10, 8
        """)
    elif mode == "zero":
        t("s_mov_b32 s10, 0")
    t(f"""
    s_min_u32 s10, s10, 10000
    s_mul_i32 s10, s10, {AMP}
    s_memrealtime s[16:17]
    s_waitcnt lgkmcnt(0)
    L_spin:
    s_memrealtime s[18:19]
    s_waitcnt lgkmcnt(0)
    s_sub_u32 s18, s18, s16
    s_cmp_lt_u32 s18, s10
    s_cbranch_scc1 L_spin
    L_pend:
    s_endpgm
    """)
    emit(path, [main, t], [main, t])
if __name__ == "__main__":
    gm = importlib.import_module(sys.argv[1])
    build(gm, "p_zero.s", 0, 0, mode="zero")
    build(gm, "p_total.s", 0, 40)
    build(gm, "p_skew.s", 0, 0)
    build(gm, "p_b0.s", 0, 1, 4, 4, mode="mean")
    build(gm, "p_b8.s", 0, 9, 4, 4, mode="mean")
    build(gm, "p_mean.s", 0, 40, mode="mean")
```

```python
import sys
from asmlib import *
import hazard

WS_EPA   = 0
WS_EPK   = 2048
WS_G     = 8192
WS_KVA   = 16384
WS_FLAGA = 786432
WS_FLAGK = 851968
WS_KVP   = 131072
KVP_STRIDE = 4608
WS_A2    = 1 << 20
A2_TG    = 120 * 1024
WS_USED  = WS_A2 + 64 * A2_TG
WS_STAMP = 16 << 20

SLOT = 16384
NSLOT = 9
MISC = NSLOT * SLOT
M_ZST = MISC
M_KVF = MISC + 1024
M_ZF  = MISC + 3072
M_GW  = MISC
LDS_BYTES = MISC + 4096

sPFS = 3
sPF, sX, sW1, sW2, sWO, sWS, sOUT, sGW = 4, 8, 12, 16, 20, 24, 28, 32
pX, pWQ, pWO, pW1, pW2, pGW, pOUT, pDBG, pWS = 36, 38, 40, 44, 46, 48, 50, 52, 54
sWAVE, sRB, sROLE, sJJ, sTB, sCB, sROT, sROT2, sTAG, sBUD = 56, 57, 58, 59, 60, 61, 62, 63, 64, 65
sLW, sT0, sT1, sT2, sFLG, sW01, sFB0, sFB1 = 66, 67, 68, 69, 70, 71, 72, 73
sMASK16 = 74
sP64, sCBB = 74, 75
sRDY, sIDX, sTAGK, sPFO = 76, 77, 78, 79
sKF = 36
sFG = [80, 88, 44]
sPITCH, sHA, sCBA, sIS = 28, 29, 30, 31
sC0, sC1 = 52, 42
sST = 96
sSB, sSS, sSO, sSD = 80, 82, 84, 90

def srd(b): return f"s[{b}:{b+3}]"
def vr(b, n=4): return f"v[{b}:{b+n-1}]"

class Cfg:
    L = 4; NB = 5
    mapping = "A"
    G = 12; pub_o = 15; pub_hB = 13
    pub_hA = 40
    pub_kv = 12
    firstA2 = {0: 10, 1: 10}
    nW2pre = 5
    npro = 4
    cap = {}
    fill = 3
    phiq_at = 12
    stamps = False
    rot = False; rot2 = "jj"; own = True
    prio = True; touch = True; ctouch = True; align = True
    outaux = ""
    a2aux = "sc1"
    keepB = {0: (), 1: (9, 11)}
    kvatom = False
    Glast = False
    thr = None
    thr_from = 0
    dt = None
    w2t = None
    st_n = 6
    cap2 = 3
    Gsplit = False
    vt = (2, 2, 1, 3, 2)
    st_first = 4
    st_cons = 0
    st_plan = {-1: 1, 0: 1, 1: 1, 2: 1, 3: 1, 4: 1, 5: 1, 6: 1}

class DS:
    def __init__(self, k):
        self.k = k; self.n = 0; self.done = 0; self.base = {}
    def addr(self, v, a):
        b = self.base.get(v, 0)
        if not (0 <= a - b <= 65535):
            nb = min(a & ~0x3fff, 98304)
            self.k(f"v_add_u32 v{v}, {(nb - b) & 0xffffffff}, v{v}")
            self.base[v] = b = nb
        return a - b
    def op(self, text):
        while self.n - self.done >= 15: self.wait(self.done + 1)
        self.k(text); self.n += 1; return self.n
    def read128(self, dst, v, a):
        o = self.addr(v, a); return self.op(f"ds_read_b128 {vr(dst)}, v{v} offset:{o}")
    def tr(self, dst, v, a):
        o = self.addr(v, a); return self.op(f"ds_read_b64_tr_b16 v[{dst}:{dst+1}], v{v} offset:{o}")
    def wait(self, tok):
        if tok > self.done:
            self.k(f"s_waitcnt lgkmcnt({self.n - tok})"); self.done = tok
    def waitall(self): self.wait(self.n)

class Gen:
    def __init__(self, cfg):
        self.c = cfg
        self.k = K(KN + "_kernel", 256, 512, LDS_BYTES, vgpr=256, sgpr=102)
        self.S = {r: self.schedule(r) for r in (0, 1)}

    def tau(self, b): return {"8x": 8.3, "8y": 8.6}.get(b, b)
    def bars_of(self, role):
        return list(range(9)) + (["8x", "8y"] if role == 0 else []) + list(self.c.keepB[role]) + list(range(12, 27))
    def pub_bar(self, role, m):
        nat = 8 + (m + self.c.L) // 16
        return max(self.tau(b) for b in self.bars_of(role) if self.tau(b) < nat + 1)
    def schedule(self, role):
        c = self.c; tau = self.tau
        bars = self.bars_of(role)
        needbar = {}
        for t in range(27):
            needbar[t] = t if t in bars else ("8x" if (role == 0 and not [b for b in c.keepB[0] if b <= t]) else max(b for b in bars if b not in ("8x", "8y") and b <= t))
        pos = {b: i for i, b in enumerate(bars)}
        order = []
        for t in range(8): order += [("A", t), ("W", t)]
        order += [("W", t) for t in range(8, 12 + c.nW2pre)]
        a, w = 12, 12 + c.nW2pre
        while a < 27 or w < 27:
            if a < 27: order.append(("A", a)); a += 1
            if a < w - 1 and a < 27: order.append(("A", a)); a += 1
            if w < 27 and w <= a + 2: order.append(("W", w)); w += 1
        pubA = self.pub_bar(1, c.pub_hA)
        def freebar(it):
            kind, t = it
            if role == 0 and it == ("W", 7): return "8x"
            f = t + 1 if (kind == "A" or t >= 11) else t + 2
            return min([b for b in bars if tau(b) >= f], key=tau, default=None)
        def allowed(it, cur, nxt):
            kind, t = it
            if kind == "W" or t < 8: return True
            if t == 12 and role == 1 and c.own: return cur > pubA and cur >= c.firstA2[role]
            if t < 20: return nxt > pubA and cur >= c.firstA2[role]
            if t < 23: return nxt > c.pub_hB
            return nxt > c.pub_o
        assert tau(self.bars_of(0)[self.bars_of(0).index(c.G) + 1]) > self.pub_bar(0, c.pub_kv)
        free = list(range(NSLOT)); rel = {}; slot = {}; sched = []; qi = 0
        for i in range(len(bars) + 1):
            cur = bars[i - 1] if i > 0 else -1
            nxt = tau(bars[i]) if i < len(bars) else 99
            if i > 0: free += rel.pop(cur, [])
            if role == 0 and cur == 8:
                slot["S"] = free.pop(0); rel.setdefault("8y", []).append(slot["S"])
            dflt = {"8x": 0, "8y": 9}.get(cur, 2 * max(1, int(nxt) - int(tau(cur))))
            if tau(cur) >= 11: dflt = c.cap2
            cap = c.npro if i == 0 else c.cap.get((role, cur), dflt)
            items = []
            while qi < len(order) and free and len(items) < cap and allowed(order[qi], tau(cur), nxt):
                it = order[qi]; qi += 1
                slot[it] = free.pop(0)
                rel.setdefault(freebar(it), []).append(slot[it])
                items.append(it)
            sched.append(items)
        assert qi == len(order), (role, order[qi:])
        for i, items in enumerate(sched):
            for (kind, t) in items: assert i <= pos[needbar[t]], (role, kind, t, i)
        self.needbar = getattr(self, "needbar", {}); self.needbar[role] = needbar
        return bars, sched, slot

    def mk_srd(self, b, p, nbytes):
        self.k(f"s_mov_b32 s{b}, s{p}\ns_mov_b32 s{b+1}, s{p+1}\ns_mov_b32 s{b+2}, {nbytes}\ns_mov_b32 s{b+3}, 0x20000")
    def epoch_load(self):
        self.k(f"""
        s_lshl_b32 s{sTAG}, s{sRB}, 7
        s_lshl_b32 s{sTAGK}, s{sJJ}, 7
        s_add_u32 s{sTAGK}, s{sTAGK}, {WS_EPK}
        s_load_dword s{sTAG}, s[{pWS}:{pWS+1}], s{sTAG}
        s_load_dword s{sTAGK}, s[{pWS}:{pWS+1}], s{sTAGK}
        """)
    def epoch_tag(self):
        self.k("s_waitcnt lgkmcnt(0)")
        for r in (sTAG, sTAGK):
            self.k(f"s_mul_i32 s{r}, s{r}, 1664525\ns_add_u32 s{r}, s{r}, 1013904223")
    def stamp_addr(self, vtmp):
        self.k(f"""
        s_lshl_b32 s{sT0}, s2, 3
        s_add_u32 s{sT0}, s{sT0}, s{sWAVE}
        s_lshl_b32 s{sT0}, s{sT0}, 8
        s_add_u32 s{sT0}, s{sT0}, {WS_STAMP}
        v_lshlrev_b32 v{vtmp}, 2, v1
        v_add_u32 v{vtmp}, s{sT0}, v{vtmp}
        """)

    def prologue(self):
        k = self.k; c = self.c
        if c.stamps: k(f"s_memrealtime s[{sST}:{sST+1}]")
        k(f"""
        s_cmp_ge_u32 s2, 256
        s_cbranch_scc1 L_end
        s_load_dwordx16 s[36:51], s[0:1], 0
        s_load_dwordx4 s[52:55], s[0:1], 64
        v_lshrrev_b32 v1, 6, v0
        s_and_b32 s{sT0}, s2, 7
        v_readfirstlane_b32 s{sWAVE}, v1
        v_and_b32 v1, 63, v0
        s_lshr_b32 s{sT1}, s2, 3                ; idx
        """)
        if c.mapping == "A":
            k(f"""
            s_lshr_b32 s{sRB}, s{sT0}, 1
            s_lshl_b32 s{sRB}, s{sRB}, 2
            s_lshr_b32 s{sT2}, s{sT1}, 3
            s_add_u32 s{sRB}, s{sRB}, s{sT2}
            s_and_b32 s{sROLE}, s{sT1}, 1
            s_and_b32 s{sT0}, s{sT0}, 1
            s_bfe_u32 s{sJJ}, s{sT1}, 0x20001
            s_lshl2_add_u32 s{sJJ}, s{sT0}, s{sJJ}
            s_lshl1_add_u32 s{sTB}, s{sRB}, s{sT0}
            s_and_b32 s{sCB}, s{sT1}, 7
            s_lshl_b32 s{sROT}, s{sT2}, 1
            s_xor_b32 s{sROT}, s{sROT}, s{sCB}
            """)
        else:
            k(f"""
            s_lshr_b32 s{sRB}, s{sT0}, 2
            s_lshl_b32 s{sRB}, s{sRB}, 3
            s_lshr_b32 s{sT2}, s{sT1}, 2
            s_add_u32 s{sRB}, s{sRB}, s{sT2}
            s_and_b32 s{sROLE}, s{sT1}, 1
            s_and_b32 s{sT0}, s{sT0}, 3
            s_bfe_u32 s{sJJ}, s{sT1}, 0x10001
            s_lshl1_add_u32 s{sJJ}, s{sT0}, s{sJJ}
            s_and_b32 s{sTB}, s{sT0}, 1
            s_lshl1_add_u32 s{sTB}, s{sRB}, s{sTB}
            s_and_b32 s{sCB}, s{sT1}, 3
            s_lshl_b32 s{sROT}, s{sCB}, 1
            s_xor_b32 s{sROT}, s{sROT}, s{sT2}
            s_lshr_b32 s{sT0}, s{sT0}, 1
            s_lshl2_add_u32 s{sCB}, s{sT0}, s{sCB}
            """)
        if c.rot is False: k(f"s_mov_b32 s{sROT}, 0")
        elif c.rot is not True: k(f"s_and_b32 s{sROT}, s{sROT}, {c.rot}")
        k(f"""
        s_cmp_lt_u32 s{sWAVE}, 4
        s_cbranch_scc1 L_consumer
        """)

    vX, vWA, vWB, vW2, vA2, vT = 4, 8, 12, 16, 20, 21
    def l_commit(self, slow):
        if self.c.stamps is not True or self.pend is None: return
        i = self.pend; self.pend = None
        if slow: self.k("s_sleep 3")
        self.k(f"v_writelane_b32 v3, s96, {1+i}\nv_writelane_b32 v2, s98, {i}\nv_writelane_b32 v2, s100, {32+i}")
    def l_issue(self, it, slot):
        k = self.k; c = self.c
        kind, t = it; s = t - 12
        if kind == "A" and t >= 12: self.flag_need(s)
        k(f"s_add_u32 m0, s{sLW}, {slot[it]*SLOT}")
        aux = ""
        if kind == "A" and t < 8:
            k(f"s_xor_b32 s{sT1}, s{sROT}, {t}\ns_lshl_b32 s{sT1}, s{sT1}, 7"); v, r = self.vX, sX
        elif kind == "W" and t < 8:
            k(f"s_xor_b32 s{sT1}, s{sROT}, {t}\ns_mul_i32 s{sT1}, s{sT1}, s{sP64}"); v, r = self.vWA, sW1
        elif kind == "W" and t < 12:
            k(f"s_and_b32 s{sT1}, s{sROT}, 6\ns_xor_b32 s{sT1}, s{sT1}, {2*(t-8)}\ns_mul_i32 s{sT1}, s{sT1}, s{sP64}"); v, r = self.vWB, sW1
        elif kind == "W":
            if s < 8: k(f"s_bfe_u32 s{sT1}, s{sROT2}, {0x30000 + 4*s}\ns_lshl_b32 s{sT1}, s{sT1}, 17")
            else: k(f"s_mov_b32 s{sT1}, {(s if s < 11 else s-11) << 17}")
            v, r = self.vW2, (sW2 if s < 11 else sWO)
        else:
            if s < 8: k(f"s_lshl_b32 s{sT1}, s{sIDX}, 13")
            else: k(f"s_mov_b32 s{sT1}, {s << 13}")
            v, r, aux = self.vA2, sWS, c.a2aux
        if c.thr is not None and self.cur_int >= c.thr_from: k(f"s_waitcnt vmcnt({c.thr})")
        for i in range(4):
            vv = v if v == self.vA2 else v + i
            k(f"buffer_load_dwordx4 v{vv}, {srd(r)}, s{sT1} offen offset:{i*1024} {aux} lds")
            self.vm.append(it)
    def l_touch(self):
        vT = self.vT
        self.k(f"buffer_load_dword v{vT+7}, v{vT+6}, {srd(sPF)}, s{sPFO} offen\ns_add_u32 s{sPFO}, s{sPFO}, s{sPFS}")
        self.vm.append("X")
    def l_barrier(self, i, nb, nitems, role=0):
        k = self.k; c = self.c; vm = self.vm
        self.l_commit(nitems < 2)
        if c.stamps is True: k("s_memrealtime s[98:99]")
        last = max([j for j, x in enumerate(vm) if x != "X" and self.needbar[role][x[1]] == nb], default=-1)
        if last >= 0: k(f"s_waitcnt vmcnt({len(vm) - 1 - last})")
        if c.stamps is True: k("s_memrealtime s[100:101]")
        k("s_barrier")
        if c.stamps is True: k("s_memrealtime s[96:97]"); self.pend = i

    NCOMMON = 9
    def loader_common(self):
        k = self.k; c = self.c
        vX, vWA, vWB, vW2, vA2, vT = self.vX, self.vWA, self.vWB, self.vW2, self.vA2, self.vT
        bars, sched, slot = self.S[0]
        for i in range(self.NCOMMON):
            assert sched[i] == self.S[1][1][i] and all(slot[x] == self.S[1][2][x] for x in sched[i])
        self.vm = []; self.pend = None
        k(f"""
        s_sub_u32 s{sT2}, s{sWAVE}, 4          ; w
        s_lshl_b32 s{sLW}, s{sT2}, 12
        v_lshrrev_b32 v{vT}, 3, v1
        v_lshrrev_b32 v{vT+1}, 4, v1
        v_and_b32 v{vT+2}, 7, v1
        v_xor_b32 v{vT+2}, v{vT+2}, v{vT+1}
        v_lshlrev_b32 v{vT+2}, 4, v{vT+2}
        v_lshl_add_u32 v{vT+2}, v{vT}, 10, v{vT+2}
        s_lshl2_add_u32 s{sT0}, s{sRB}, s{sT2}
        s_lshl_b32 s{sT0}, s{sT0}, 15
        v_add_u32 v{vX}, s{sT0}, v{vT+2}
        v_xor_b32 v{vX+1}, 64, v{vX}
        v_add_u32 v{vX+2}, {2*7168}, v{vX}
        v_add_u32 v{vX+3}, {3*7168}, v{vX+1}
        v_add_u32 v{vX+1}, {7168}, v{vX+1}
        s_lshl_b32 s{sCBB}, s{sJJ}, 7
        s_add_u32 s{sCBA}, s{sCBB}, 1024
        s_movk_i32 s{sPITCH}, 3072
        s_movk_i32 s{sHA}, 1024
        s_cmp_eq_u32 s{sROLE}, 0
        s_cbranch_scc1 L_par0
        s_lshl_b32 s{sCBA}, s{sJJ}, 8
        s_add_u32 s{sCBB}, s{sCBB}, 2048
        s_movk_i32 s{sPITCH}, 2752
        s_movk_i32 s{sHA}, 128
        L_par0:
        s_lshl_b32 s{sP64}, s{sPITCH}, 6
        s_lshl_b32 s{sIS}, s{sPITCH}, 2
        s_sub_u32 s{sIS}, s{sIS}, 1024
        v_bfe_u32 v{vT+2}, v1, 2, 2
        v_xor_b32 v{vT+2}, v{vT+2}, v{vT+1}
        v_and_b32 v{vT+3}, 1, v{vT+2}
        v_lshlrev_b32 v{vT+3}, 6, v{vT+3}
        v_and_b32 v{vT}, 3, v1
        v_lshl_add_u32 v{vT+3}, v{vT}, 4, v{vT+3}
        v_lshrrev_b32 v{vT+2}, 1, v{vT+2}      ; half
        s_lshl_b32 s{sT0}, s{sT2}, 4
        v_add_u32 v{vT+1}, s{sT0}, v{vT+1}     ; R (i=0)
        v_mad_u32_u24 v{vT+4}, v{vT+1}, s{sPITCH}, v{vT+3}
        v_mad_u32_u24 v{vWA}, v{vT+2}, s{sHA}, v{vT+4}
        v_add_u32 v{vWA}, s{sCBA}, v{vWA}
        v_add_u32 v{vWA+1}, s{sIS}, v{vWA}
        v_add_u32 v{vWA+2}, s{sIS}, v{vWA+1}
        v_add_u32 v{vWA+3}, s{sIS}, v{vWA+2}
        s_mov_b32 s{sX+2}, {2048*1024}
        s_mov_b32 s{sX+3}, 0x20000
        s_lshl_b32 s{sW1+2}, s{sPITCH}, 9
        s_mov_b32 s{sW1+3}, 0x20000
        """)
        if c.vt: self.touch_setup_pre()
        k(f"""
        s_cmp_eq_u32 s{sROLE}, 0
        s_waitcnt lgkmcnt(0)
        s_mov_b32 s{sX}, s{pX}
        s_mov_b32 s{sX+1}, s{pX+1}
        s_cselect_b32 s{sW1}, s{pWQ}, s{pW1}
        s_cselect_b32 s{sW1+1}, s{pWQ+1}, s{pW1+1}
        """)
        items = sched[0]
        self.st_next = c.st_cons
        self.cur_int = -1
        if c.dt: self.dedicated_touch()
        for n, it in enumerate(items):
            if c.vt and n == c.vt[4]: self.touch_go()
            if n == 3:
                if c.stamps: k(f"v_mov_b32 v3, 0\nv_mov_b32 v2, 0\nv_writelane_b32 v3, s{sST}, 0")
                self.epoch_load()
            self.l_issue(it, slot)
        if c.vt and c.vt[4] >= len(items): self.touch_go()
        self.epoch_tag()
        if c.st_plan:
            if c.st_first + c.st_cons < 9: self.st_setup(sT2, c.st_first + c.st_cons)
            for _ in range(c.st_plan.get(-1, 0)): self.st_unit(sT2)
        self.l_barrier(0, 0, 2)
        for i in range(1, self.NCOMMON):
            cur = bars[i-1]; self.cur_int = cur
            for it in sched[i]: self.l_issue(it, slot)
            if c.w2t == cur: self.w2_touch()
            for _ in range(c.st_plan.get(cur, 0)): self.st_unit(sT2)
            if cur == 0:
                k(f"""
                s_mov_b32 s{sBUD}, 0x8000
                s_cmp_lt_u32 s{sJJ}, 6
                s_cselect_b32 s{sT0}, s{sJJ}, 0
                s_lshl_b32 s{sT0}, s{sT0}, {2 if c.rot2 == 'jj' else 8}
                s_mov_b32 s{sFB0}, 0x10543210
                s_mov_b32 s{sFB1}, 0x5432
                s_lshr_b64 s[{sFB0}:{sFB1}], s[{sFB0}:{sFB1}], s{sT0}
                s_and_b32 s{sROT2}, s{sFB0}, 0xffffff
                s_or_b32 s{sROT2}, s{sROT2}, 0x76000000
                s_and_b32 s{sW01}, s{sT2}, 1
                s_and_b32 s{sT1}, s{sROT}, 1
                v_xor_b32 v{vT+5}, s{sT1}, v{vT+2}
                v_mad_u32_u24 v{vWB}, v{vT+5}, s{sP64}, v{vT+4}
                v_add_u32 v{vWB}, s{sCBB}, v{vWB}
                v_add_u32 v{vT+5}, s{sCBB}, v{vT+3}
                v_cmp_le_u32 vcc, s{sPITCH}, v{vT+5}
                v_mov_b32 v{vT+5}, 0x80000000
                v_cndmask_b32 v{vWB}, v{vWB}, v{vT+5}, vcc
                v_add_u32 v{vWB+1}, s{sIS}, v{vWB}
                v_add_u32 v{vWB+2}, s{sIS}, v{vWB+1}
                v_add_u32 v{vWB+3}, s{sIS}, v{vWB+2}
                v_lshl_add_u32 v{vW2}, v{vT+1}, 10, v{vT+3}
                v_lshl_add_u32 v{vW2}, v{vT+2}, 16, v{vW2}
                s_lshl_b32 s{sT0}, s{sCB}, 7
                v_add_u32 v{vW2}, s{sT0}, v{vW2}
                v_add_u32 v{vW2+1}, 3072, v{vW2}
                v_add_u32 v{vW2+2}, 6144, v{vW2}
                v_add_u32 v{vW2+3}, 9216, v{vW2}
                """)
            if cur == 1:
                k(f"""
                s_lshr_b32 s{sT0}, s{sT2}, 1
                s_lshl1_add_u32 s{sT0}, s{sTB}, s{sT0}       ; tg
                s_lshl3_add_u32 s{sT1}, s{sT0}, s{sCB}
                s_lshl_b32 s{sT1}, s{sT1}, 7
                s_add_u32 s{sT1}, s{sT1}, {WS_FLAGA}
                s_mov_b32 s{sRDY}, 0
                s_add_u32 s{sFB0}, s{pWS}, s{sT1}
                s_addc_u32 s{sFB1}, s{pWS+1}, 0
                s_mul_i32 s{sT0}, s{sT0}, {A2_TG}
                s_lshl_b32 s{sT1}, s{sW01}, 12
                s_add_u32 s{sT0}, s{sT0}, s{sT1}
                s_add_u32 s{sT0}, s{sT0}, {WS_A2}
                v_lshlrev_b32 v{vA2}, 4, v1
                v_add_u32 v{vA2}, s{sT0}, v{vA2}
                """)
                self.mk_srd(sW2, pW2, 1376*1024)
                self.mk_srd(sWO, pWO, 512*1024)
                self.mk_srd(sWS, pWS, WS_USED)
            if cur == 3:
                self.mk_srd(sGW, pGW, 1024)
                k(f"""
                s_lshl_b32 s{sT0}, s{sROT}, 3
                v_xor_b32 v{vT+5}, s{sT0}, v1
                v_lshlrev_b32 v{vT+5}, 4, v{vT+5}
                s_mov_b32 m0, {M_GW}
                buffer_load_dwordx4 v{vT+5}, {srd(sGW)}, 0 offen lds
                """)
                self.vm.append(("W", 7))
            if i == self.NCOMMON - 1:
                k(f"s_cmp_eq_u32 s{sROLE}, 0\ns_cbranch_scc0 L_load1")
                self.common_state = (list(self.vm), self.pend)
            else:
                self.l_barrier(i, bars[i], len(sched[i]))

    def loader(self, role):
        k = self.k; c = self.c; vT = self.vT
        bars, sched, slot = self.S[role]
        self.vm, self.pend = list(self.common_state[0]), self.common_state[1]
        k(f"L_load{role}:")
        i0 = self.NCOMMON - 1
        self.l_barrier(i0, bars[i0], len(sched[i0]), role)
        first_int = {}
        for i, items in enumerate(sched):
            for (kind, t) in items:
                if kind == "A" and t in (12, 20, 23): first_int[i] = {12: 0, 20: 1, 23: 2}[t]
        Gi = bars.index(c.G) + 1 if role == 0 else 99
        assert min(first_int) > i0 + 1 and Gi > i0 + 1
        k("s_waitcnt lgkmcnt(0)")
        for i in range(i0 + 1, len(sched)):
            items = sched[i]; cur = bars[i-1]; self.cur_int = self.tau(cur)
            gathered = role == 0 and cur == c.G
            if gathered and not c.Glast: self.kv_gather_issue()
            if role == 1 and c.own and ("A", 12) in items:
                assert c.rot2 == "jj"
                k(f"s_bitset1_b32 s{sRDY}, s{sJJ}")
            for it in items: self.l_issue(it, slot)
            if gathered and c.Glast: self.kv_gather_issue()
            if role == 0 and i == Gi + (1 if c.Gsplit else 0): self.kv_gather_finish()
            if role == 0 and c.kvatom and cur == 8: self.kv_zero_wait()
            if cur == 22: self.flag_need("gate")
            if i + 1 in first_int: self.flag_load(first_int[i+1])
            if role == 0 and i + 1 == Gi: self.kv_flag_load()
            if i < len(bars): self.l_barrier(i, bars[i], len(items), role)
        self.l_commit(True)
        l = k.label("EP")
        if role == 0:
            k(f"""
            s_cmp_lg_u32 s{sRB}, 0
            s_cbranch_scc1 {l}
            s_lshl_b32 s{sT0}, s{sJJ}, 7
            s_add_u32 s{sT0}, s{sT0}, {WS_EPK}
            v_mov_b32 v{vT}, s{sTAGK}
            """)
        else:
            k(f"""
            s_cmp_lg_u32 s{sJJ}, 0
            s_cbranch_scc1 {l}
            s_lshl_b32 s{sT0}, s{sRB}, 7
            v_mov_b32 v{vT}, s{sTAG}
            """)
        k(f"""
        s_cmp_lg_u32 s{sWAVE}, 4
        s_cbranch_scc1 {l}
        s_mov_b64 exec, 1
        buffer_store_dword v{vT}, off, {srd(sWS)}, s{sT0} sc1
        s_mov_b64 exec, -1
        {l}:
        """)
        if c.stamps:
            k(f"s_cmp_ge_u32 s{sJJ}, 6\ns_cselect_b32 s{sT0}, s{sROLE}, 0\ns_add_u32 s{sT0}, s{sT0}, s{sROLE}\nv_writelane_b32 v3, s{sT0}, 63")
            self.stamp_addr(vT+1)
            k(f"global_store_dword v{vT+1}, v3, s[{pWS}:{pWS+1}]\nv_add_u32 v{vT+1}, {1<<20}, v{vT+1}\nglobal_store_dword v{vT+1}, v2, s[{pWS}:{pWS+1}]")
        k("s_endpgm")

    def touch_setup_pre(self):
        k = self.k; vT = self.vT
        xa, xn, wa, wn, _ = self.c.vt
        l1 = k.label("TS")
        n1 = -(-43 * wn // 8) + 1
        k(f"""
        s_mul_i32 s{sT1}, s2, {6*wn}
        s_add_u32 s{sT1}, s{sT1}, {wa*1536}
        s_mov_b32 s{sT0}, {6*wn}
        s_mul_i32 s{sPFO}, s2, {43*wn}
        s_lshr_b32 s{sPFO}, s{sPFO}, 3
        s_add_u32 s{sPFO}, s{sPFO}, {wa*1376}
        s_cmp_eq_u32 s{sT2}, 2
        s_cselect_b32 s{sT1}, s{sPFO}, s{sT1}
        s_cselect_b32 s{sT0}, {n1}, s{sT0}
        v_add_u32 v{vT+6}, s{sT1}, v1
        v_lshlrev_b32 v{vT+6}, 7, v{vT+6}
        s_cmp_eq_u32 s{sT2}, 3
        s_cselect_b32 s{sT0}, 0, s{sT0}
        s_cmp_lg_u32 s{sT2}, 0
        s_cbranch_scc1 {l1}
        s_mov_b32 s{sT0}, {8*xn}
        s_lshl_b32 s{sT1}, s2, 13
        s_add_u32 s{sT1}, s{sT1}, {128*xa}
        v_and_b32 v{vT+6}, 7, v1
        v_lshlrev_b32 v{vT+6}, 10, v{vT+6}
        v_lshrrev_b32 v{vT+7}, 3, v1
        v_lshl_add_u32 v{vT+6}, v{vT+7}, 7, v{vT+6}
        v_add_u32 v{vT+6}, s{sT1}, v{vT+6}
        {l1}:
        v_cmp_gt_u32 vcc, s{sT0}, v1
        v_mov_b32 v{vT+7}, 0x80000000
        v_cndmask_b32 v{vT+6}, v{vT+7}, v{vT+6}, vcc
        """)
    def touch_go(self):
        k = self.k; vT = self.vT
        k(f"""
        s_mov_b32 s{sPF+3}, 0x20000
        s_mov_b32 s{sPF+2}, {512*3072}
        s_cmp_eq_u32 s{sT2}, 2
        s_cselect_b32 s{sPF}, s{pW1}, s{pWQ}
        s_cselect_b32 s{sPF+1}, s{pW1+1}, s{pWQ+1}
        s_cselect_b32 s{sPF+2}, {512*2752}, s{sPF+2}
        s_cmp_eq_u32 s{sT2}, 0
        s_cselect_b32 s{sPF}, s{pX}, s{sPF}
        s_cselect_b32 s{sPF+1}, s{pX+1}, s{sPF+1}
        s_cselect_b32 s{sPF+2}, {2048*1024}, s{sPF+2}
        buffer_load_dword v{vT+7}, v{vT+6}, {srd(sPF)}, 0 offen
        """)
        self.vm.append("X")

    def dedicated_touch(self):
        k = self.k; vT = self.vT
        first, full = self.c.dt
        l0, l1, l2 = k.label("DT"), k.label("DT"), k.label("DT")
        k(f"""
        s_lshl3_add_u32 s{sT0}, s{sROLE}, s{sJJ}
        s_cmp_lt_u32 s{sT0}, 14
        s_cbranch_scc1 {l0}
        s_cmp_eq_u32 s{sT2}, 3
        s_cbranch_scc1 {l2}
        s_and_b32 s{sT0}, s{sJJ}, 1
        s_lshl1_add_u32 s{sT0}, s{sRB}, s{sT0}       ; u
        s_mov_b32 s{sPF+3}, 0x20000
        s_mov_b32 s{sPF}, s{pX}
        s_mov_b32 s{sPF+1}, s{pX+1}
        s_mov_b32 s{sPF+2}, {2048*1024}
        s_mov_b32 s{sPFS}, 128
        s_lshl_b32 s{sPFO}, s{sT0}, 16
        v_lshlrev_b32 v30, 10, v1
        s_cmp_eq_u32 s{sT2}, 0
        s_cbranch_scc1 {l1}
        s_mov_b32 s{sPF}, s{pW1}
        s_mov_b32 s{sPF+1}, s{pW1+1}
        s_mov_b32 s{sPF+2}, {512*2752}
        s_mov_b32 s{sPFS}, {64*2752}
        s_mul_i32 s{sPFO}, s{sT0}, {2*2752}
        v_min_u32 v30, 42, v1
        v_lshlrev_b32 v30, 7, v30
        s_cmp_eq_u32 s{sT2}, 2
        s_cbranch_scc1 {l1}
        s_mov_b32 s{sPF}, s{pWQ}
        s_mov_b32 s{sPF+1}, s{pWQ+1}
        s_mov_b32 s{sPF+2}, {512*3072}
        s_mov_b32 s{sPFS}, {64*3072}
        s_mul_i32 s{sPFO}, s{sT0}, {2*3072}
        """)
        if full:
            k("v_min_u32 v30, 47, v1\nv_lshlrev_b32 v30, 7, v30")
        else:
            k(f"v_min_u32 v31, 31, v1\nv_lshrrev_b32 v30, 4, v31\nv_lshlrev_b32 v30, 10, v30\nv_lshl_add_u32 v30, v31, 7, v30\nv_add_u32 v30, 1024, v30")
        k(f"""
        {l1}:
        s_mul_i32 s{sT0}, s{sPFS}, {first}
        s_add_u32 s{sPFO}, s{sPFO}, s{sT0}
        """)
        for cch in range(first, 8):
            k(f"buffer_load_dword v31, v30, {srd(sPF)}, s{sPFO} offen\ns_add_u32 s{sPFO}, s{sPFO}, s{sPFS}\ns_waitcnt vmcnt(1)")
        k(f"{l2}:\ns_barrier\n{l0}:")
    def w2_touch(self):
        k = self.k
        k(f"""
        s_lshl3_add_u32 s{sT0}, s{sRB}, s{sJJ}
        s_mul_i32 s{sT1}, s{sT0}, 86
        s_mul_i32 s{sPFO}, s{sT2}, 29
        s_add_u32 s{sPFO}, s{sPFO}, s{sT1}
        s_lshl_b32 s{sT0}, s{sT0}, 5
        s_mov_b32 s{sPF+3}, 0x20000
        s_mov_b32 s{sPF+2}, {1376*1024}
        s_cmp_eq_u32 s{sT2}, 3
        s_cselect_b32 s{sPF}, s{pWO}, s{pW2}
        s_cselect_b32 s{sPF+1}, s{pWO+1}, s{pW2+1}
        s_cselect_b32 s{sPF+2}, {512*1024}, s{sPF+2}
        s_cselect_b32 s{sPFO}, s{sT0}, s{sPFO}
        s_cselect_b32 s{sT0}, 31, 28
        s_lshl_b32 s{sPFO}, s{sPFO}, 7
        s_cmp_eq_u32 s{sROLE}, 0
        s_cselect_b32 s{sPF+2}, s{sPF+2}, 0
        v_min_u32 v30, s{sT0}, v1
        v_lshlrev_b32 v30, 7, v30
        buffer_load_dword v31, v30, {srd(sPF)}, s{sPFO} offen
        """)
        self.vm.append("X")

    def st_setup(self, w, chunk):
        k = self.k
        l0, l1 = k.label("SS"), k.label("SS")
        k(f"""
        s_cmp_lt_u32 s{w}, 2
        s_cbranch_scc1 {l0}
        s_mul_i32 s{sT0}, s2, 6
        s_mul_i32 s{sT1}, s2, 43
        s_lshr_b32 s{sT1}, s{sT1}, 3
        s_mov_b32 s{sSS}, {64*3072}
        s_cmp_eq_u32 s{w}, 3
        s_cselect_b32 s{sT0}, s{sT1}, s{sT0}
        s_cselect_b32 s{sSS}, {64*2752}, s{sSS}
        s_cselect_b32 s{sSB}, s{pW1}, s{pWQ}
        s_cselect_b32 s{sSB+1}, s{pW1+1}, s{pWQ+1}
        s_lshl_b32 s{sT0}, s{sT0}, 7
        """)
        for i in range(6): k(f"s_add_u32 s{sSO+i}, s{sT0}, {128*i+60}")
        k(f"""
        s_branch {l1}
        {l0}:
        s_lshl1_add_u32 s{sT0}, s2, s{w}
        s_lshl_b32 s{sT0}, s{sT0}, 12
        s_mov_b32 s{sSS}, 128
        s_mov_b32 s{sSB}, s{pX}
        s_mov_b32 s{sSB+1}, s{pX+1}
        """)
        for i in range(6): k(f"s_add_u32 s{sSO+i}, s{sT0}, {1024*min(i,3)+60}")
        k(f"""
        {l1}:
        s_mul_i32 s{sT0}, s{sSS}, {chunk}
        s_add_u32 s{sSB}, s{sSB}, s{sT0}
        s_addc_u32 s{sSB+1}, s{sSB+1}, 0
        """)
    def st_unit(self, w):
        k = self.k; c = self.c
        u = c.st_first + self.st_next; self.st_next += 1
        if u <= 8:
            if u == 8: k(f"s_lshl_b32 s{sT0}, s{sSS}, 3\ns_sub_u32 s{sSB}, s{sSB}, s{sT0}\ns_subb_u32 s{sSB+1}, s{sSB+1}, 0")
            for i in range(6): k(f"s_load_dwordx2 s[{sSD}:{sSD+1}], s[{sSB}:{sSB+1}], s{sSO+i}")
            k(f"s_add_u32 s{sSB}, s{sSB}, s{sSS}\ns_addc_u32 s{sSB+1}, s{sSB+1}, 0")
            return
        for j in range((u - 9) * c.st_n, min((u - 8) * c.st_n, 16)):
            if j == 0:
                k(f"""
                s_mul_i32 s{sT0}, s{w}, 11
                s_min_u32 s{sT0}, s{sT0}, 31
                s_mul_i32 s{sT1}, s2, 43
                s_add_u32 s{sT0}, s{sT0}, s{sT1}
                s_lshl_b32 s{sT0}, s{sT0}, 7
                s_add_u32 s{sSB}, s{pW2}, s{sT0}
                s_addc_u32 s{sSB+1}, s{pW2+1}, 0
                """)
            if j == 12:
                k(f"""
                s_lshl2_add_u32 s{sT0}, s2, s{w}
                s_lshl_b32 s{sT0}, s{sT0}, 9
                s_add_u32 s{sSB}, s{pWO}, s{sT0}
                s_addc_u32 s{sSB+1}, s{pWO+1}, 0
                """)
            k(f"s_load_dwordx2 s[{sSD}:{sSD+1}], s[{sSB}:{sSB+1}], {128*(j % 12)+60}")

    def flag_load(self, g):
        self.k(f"s_load_dwordx8 s[{sFG[g]}:{sFG[g]+7}], s[{sFB0}:{sFB1}], {32*g} glc")
    def flag_need(self, s):
        k = self.k
        if s == "gate":
            g = 1; k(f"s_mov_b32 s{sIDX}, 14")
        elif s < 8:
            g = 0; k(f"s_bfe_u32 s{sIDX}, s{sROT2}, {0x30000 + 4*s}")
        else:
            g = 1 if s < 11 else 2
            k(f"s_add_u32 s{sIDX}, s{sW01}, {8 + 2*(s-8) if s < 11 else 16 + 2*(s-11)}")
        l0, l1, l2 = k.label("FW"), k.label("FD"), k.label("FE")
        k(f"""
        s_bitcmp1_b32 s{sRDY}, s{sIDX}
        s_cbranch_scc1 {l1}
        {l0}:
        s_waitcnt lgkmcnt(0)
        s_mov_b32 s{sT0}, 0
        """)
        for i in range(7, -1, -1):
            k(f"s_cmp_eq_u32 s{sFG[g]+i}, s{sTAG}\ns_addc_u32 s{sT0}, s{sT0}, s{sT0}")
        k(f"s_cmp_eq_u32 s{sT0}, 0xff\ns_cbranch_scc1 {l2}")
        self.flag_load(g)
        k(f"""
        {l2}:
        s_lshl_b32 s{sT0}, s{sT0}, {8*g}
        s_or_b32 s{sRDY}, s{sRDY}, s{sT0}
        s_bitcmp1_b32 s{sRDY}, s{sIDX}
        s_cbranch_scc1 {l1}
        s_sub_u32 s{sBUD}, s{sBUD}, 1
        s_cbranch_scc0 {l0}
        s_mov_b32 s{sBUD}, 0
        {l1}:
        """)

    def kv_flag_addr(self):
        self.k(f"""
        s_lshl2_add_u32 s{sFLG}, s{sJJ}, s{sT2}
        s_lshl4_add_u32 s{sFLG}, s{sFLG}, s{sRB}
        s_lshl_b32 s{sFLG}, s{sFLG}, 7
        s_add_u32 s{sFLG}, s{sFLG}, {WS_FLAGK}
        """)
    def kv_zero_wait(self):
        k = self.k
        l0, l1 = k.label("ZW"), k.label("ZD")
        self.kv_flag_addr()
        k(f"""
        s_add_u32 s{sT1}, s{sFLG}, 64
        {l0}:
        s_load_dword s{sT0}, s[{pWS}:{pWS+1}], s{sT1} glc
        s_waitcnt lgkmcnt(0)
        s_cmp_eq_u32 s{sT0}, s{sTAGK}
        s_cbranch_scc1 {l1}
        s_sub_u32 s{sBUD}, s{sBUD}, 1
        s_cbranch_scc0 {l0}
        s_mov_b32 s{sBUD}, 0
        {l1}:
        """)
    def kv_flag_load(self):
        k = self.k; c = self.c
        self.kv_flag_addr()
        k(f"s_load_dwordx16 s[{sKF}:{sKF+15}], s[{pWS}:{pWS+1}], s{sFLG} glc")
        if c.kvatom:
            k(f"""
            s_lshl2_add_u32 s{sPFO}, s{sJJ}, s{sT2}
            s_mul_i32 s{sPFO}, s{sPFO}, 1152
            s_add_u32 s{sPFO}, s{sPFO}, {WS_KVA}
            v_lshlrev_b32 v29, 2, v1
            v_and_b32 v30, 60, v29
            """)
        else:
            k(f"""
            s_mul_i32 s{sPFO}, s{sJJ}, {16*KVP_STRIDE}
            s_mul_i32 s{sT1}, s{sT2}, 1152
            s_add_u32 s{sPFO}, s{sPFO}, s{sT1}
            s_add_u32 s{sPFO}, s{sPFO}, {WS_KVP}
            v_lshlrev_b32 v29, 4, v1
            v_lshrrev_b32 v30, 4, v1
            v_mul_u32_u24 v30, {KVP_STRIDE}, v30
            v_and_b32 v31, 15, v1
            v_lshl_add_u32 v30, v31, 2, v30
            """)
        k(f"""
        s_lshr_b32 s{sT0}, s{sT2}, 1
        s_lshl_b32 s{sT0}, s{sT0}, 10
        s_lshl3_add_u32 s{sT0}, s{sW01}, s{sT0}
        s_add_u32 s{sT0}, s{sT0}, {M_KVF}
        v_lshlrev_b32 v100, 4, v1
        v_add_u32 v100, s{sT0}, v100
        s_lshl_b32 s{sT0}, s{sT2}, 5
        s_add_u32 s{sT0}, s{sT0}, {M_ZF}
        v_bfe_u32 v101, v1, 2, 1
        v_lshlrev_b32 v101, 4, v101
        v_bfe_u32 v31, v1, 3, 1
        v_lshl_add_u32 v101, v31, 3, v101
        v_and_b32 v31, 3, v1
        v_lshl_add_u32 v101, v31, 1, v101
        v_add_u32 v101, s{sT0}, v101
        """)
    def kv_gather_issue(self):
        k = self.k; vm = self.vm; c = self.c
        l0, l1 = k.label("KW"), k.label("KD")
        vK = 32
        k(f"""
        {l0}:
        s_waitcnt lgkmcnt(0)
        s_xor_b32 s{sT1}, s{sKF}, s{sTAGK}
        """)
        for i in range(1, 16):
            k(f"s_xor_b32 s{sKF+i}, s{sKF+i}, s{sTAGK}\ns_or_b32 s{sT1}, s{sT1}, s{sKF+i}")
        k(f"""
        s_cbranch_scc0 {l1}
        s_load_dwordx16 s[{sKF}:{sKF+15}], s[{pWS}:{pWS+1}], s{sFLG} glc
        s_sub_u32 s{sBUD}, s{sBUD}, 1
        s_cbranch_scc0 {l0}
        s_mov_b32 s{sBUD}, 0
        s_waitcnt lgkmcnt(0)
        {l1}:
        """)
        self.kv_tok = []
        if c.kvatom:
            for e in range(4):
                k(f"buffer_load_dword v{vK+e}, v29, {srd(sWS)}, s{sPFO} offen offset:{256*e} sc1"); vm.append("X")
            k(f"buffer_load_dword v96, v30, {srd(sWS)}, s{sPFO} offen offset:1024 sc1"); vm.append("X")
            self.kv_tok.append(len(vm) - 1)
            return
        for i in range(16):
            if i % 4 == 0:
                k(f"buffer_load_dword v{96+i//4}, v30, {srd(sWS)}, s{sPFO} offen offset:1024 sc1"); vm.append("X")
            k(f"buffer_load_dwordx4 {vr(vK+4*i)}, v29, {srd(sWS)}, s{sPFO} offen sc1"); vm.append("X")
            self.kv_tok.append(len(vm) - 1)
            if i < 15: k(f"s_add_u32 s{sPFO}, s{sPFO}, {KVP_STRIDE}")
    def kv_gather_finish(self):
        k = self.k; vm = self.vm; c = self.c
        vK = 32
        k("s_setprio 3")
        if c.kvatom:
            k(f"s_waitcnt vmcnt({len(vm) - 1 - self.kv_tok[0]})")
        else:
            for i in range(1, 16):
                if i % 2 == 1: k(f"s_waitcnt vmcnt({len(vm) - 1 - self.kv_tok[min(i+1, 15)]})")
                for e in (0, 2): k(f"v_pk_add_f32 v[{vK+e}:{vK+e+1}], v[{vK+e}:{vK+e+1}], v[{vK+4*i+e}:{vK+4*i+e+1}]")
            k(f"""
            v_pk_add_f32 v[96:97], v[96:97], v[98:99]
            v_add_f32 v96, v96, v97
            v_mov_b32 v97, v96
            v_permlane16_swap_b32 v96, v97
            v_add_f32 v96, v96, v97
            v_mov_b32 v97, v96
            v_permlane32_swap_b32 v96, v97
            v_add_f32 v96, v96, v97
            """)
        k(f"""
        v_cvt_pk_bf16_f32 v{vK}, v{vK}, v{vK+1}
        v_cvt_pk_bf16_f32 v{vK+1}, v{vK+2}, v{vK+3}
        v_cvt_pk_bf16_f32 v96, v96, v96
        ds_write_b64 v100, v[{vK}:{vK+1}]
        ds_write_b16 v101, v96
        s_setprio 0
        s_waitcnt lgkmcnt(0)
        """)

    def consumer_common(self):
        k = self.k; c = self.c
        k("L_consumer:")
        if c.ctouch:
            l = k.label("CT")
            k(f"""
            s_cmp_lg_u32 s{sWAVE}, 0
            s_cbranch_scc1 {l}
            s_getpc_b64 s[4:5]
            L_pc:
            s_sub_u32 s4, s4, L_pc-{KN}_kernel
            s_subb_u32 s5, s5, 0
            v_and_b32 v2, 15, v1
            s_lshl_b32 s{sT0}, s{sT1}, 4
            v_add_u32 v2, s{sT0}, v2
            v_lshlrev_b32 v2, 7, v2
            v_min_u32 v2, L_end-{KN}_kernel, v2
            global_load_dword v12, v2, s[4:5]
            {l}:
            """)
        if c.prio: k("s_setprio 2")
        k(f"""
        ; x read addresses v2..v5 : wave*4096 + t*128 + ((2ks+kh) ^ ((t>>1)&7))*16
        v_and_b32 v10, 31, v1                  ; t
        v_lshrrev_b32 v13, 5, v1               ; kh
        v_bfe_u32 v2, v1, 1, 3
        v_xor_b32 v2, v2, v13
        v_lshlrev_b32 v2, 4, v2
        v_lshl_add_u32 v2, v10, 7, v2
        s_lshl_b32 s{sT0}, s{sWAVE}, 12
        v_add_u32 v2, s{sT0}, v2
        v_xor_b32 v3, 32, v2
        v_xor_b32 v4, 64, v2
        v_xor_b32 v5, 96, v2
        v_bfe_u32 v14, v1, 2, 2                ; r
        v_and_b32 v11, 3, v1
        v_lshlrev_b32 v11, 3, v11
        v_bfe_u32 v15, v1, 4, 1
        v_lshl_add_u32 v11, v15, 5, v11
        v_mul_u32_u24 v15, 320, v14            ; r*256 + r*64
        v_add_u32 v11, v11, v15
        v_lshl_add_u32 v6, v13, 11, v11
        v_xor_b32 v7, 64, v6
        v_xor_b32 v8, 128, v6
        v_xor_b32 v9, 192, v6
        s_and_b32 s{sT0}, s{sWAVE}, 1
        s_lshl_b32 s{sT0}, s{sT0}, 6
        v_lshl_add_u32 v11, v13, 10, v11
        v_xor_b32 v11, s{sT0}, v11
        s_lshl2_add_u32 s{sT0}, s{sRB}, s{sWAVE}     ; tg
        s_lshl_b32 s{sFLG}, s{sT0}, 10
        s_lshl2_add_u32 s{sFLG}, s{sJJ}, s{sFLG}
        s_add_u32 s{sFLG}, s{sFLG}, {WS_FLAGA}
        s_lshl_b32 s{sIDX}, s{sT0}, 7                ; tg*128
        s_mul_i32 s{sT0}, s{sT0}, {A2_TG}
        s_add_u32 s{sT0}, s{sT0}, {WS_A2}
        v_lshlrev_b32 v10, 4, v1
        v_add_u32 v10, s{sT0}, v10
        s_mov_b32 s{sMASK16}, 0xffff0000
        s_mov_b32 s{sMASK16+1}, 0xffff0000
        s_waitcnt lgkmcnt(0)
        """)
        self.epoch_load()
        if c.stamps: k(f"v_mov_b32 v0, 0\nv_writelane_b32 v0, s{sST}, 0")
        self.mk_srd(sWS, pWS, WS_USED)
        self.mk_srd(sOUT, pOUT, 2048*1024)
        k(f"s_mov_b32 s{sC0}, 0x3fb8aa3b\ns_mov_b32 s{sC0+1}, 0x3fb8aa3b\ns_mov_b32 s{sC1}, 0x358637bd")
        if c.st_cons:
            self.st_setup(sWAVE, c.st_first)
            self.st_next = 0
            for _ in range(c.st_cons): self.st_unit(sWAVE)
        lz = k.label("ZI")
        if c.kvatom:
            k(f"""
            s_lshl4_add_u32 s{sT0}, s{sROLE}, s{sRB}
            s_cmp_lg_u32 s{sT0}, s{sJJ}
            s_cbranch_scc1 {lz}
            s_lshl2_add_u32 s{sT2}, s{sJJ}, s{sWAVE}
            s_mul_i32 s{sT0}, s{sT2}, 1152
            s_add_u32 s{sT0}, s{sT0}, {WS_KVA}
            v_mov_b32 v16, 0
            v_mov_b32 v17, 0
            v_mov_b32 v18, 0
            v_mov_b32 v19, 0
            v_lshlrev_b32 v14, 4, v1
            buffer_store_dwordx4 v[16:19], v14, {srd(sWS)}, s{sT0} offen sc1
            buffer_store_dwordx4 v[16:19], v14, {srd(sWS)}, s{sT0} offen offset:128 sc1
            {lz}:
            """)
        self.epoch_tag()
        k("s_waitcnt vmcnt(0)")
        if c.kvatom:
            lz2 = k.label("ZI")
            k(f"""
            s_lshl4_add_u32 s{sT0}, s{sROLE}, s{sRB}
            s_cmp_lg_u32 s{sT0}, s{sJJ}
            s_cbranch_scc1 {lz2}
            s_lshl2_add_u32 s{sT2}, s{sJJ}, s{sWAVE}
            s_lshl_b32 s{sT0}, s{sT2}, 11
            s_add_u32 s{sT0}, s{sT0}, {WS_FLAGK + 64}
            v_mov_b32 v16, s{sTAGK}
            v_lshlrev_b32 v14, 7, v1
            s_mov_b64 exec, 0xffff
            buffer_store_dword v16, v14, {srd(sWS)}, s{sT0} offen sc1
            s_mov_b64 exec, -1
            {lz2}:
            """)
        k(f"""
        s_cmp_eq_u32 s{sROLE}, 0
        s_cbranch_scc1 L_cons0
        """)
        if c.dt: k(f"s_cmp_lt_u32 s{sJJ}, 6\ns_cbranch_scc1 L_cons1\ns_barrier")
        k("s_branch L_cons1")

    def ev(self):
        if not self.c.stamps: return
        r = 80 + 2*self.nev; assert r < 96; self.nev += 1
        self.k(f"s_memrealtime s[{r}:{r+1}]")

    def publish(self, soff, imm=0, tag=sTAG, vt=4):
        self.ev()
        self.k(f"""
        v_mov_b32 v5, s{tag}
        v_lshlrev_b32 v{vt}, 7, v1
        s_waitcnt vmcnt(0)
        s_mov_b64 exec, {0xff if tag == sTAG else 0xffff}
        buffer_store_dword v5, v{vt}, {srd(sWS)}, s{soff} offen offset:{imm} sc1
        s_mov_b64 exec, -1
        """)
        self.ev()

    def phi(self, src, dst, t):
        k = self.k
        for r in range(0, 16, 4):
            a = src + r
            k(f"""
            v_pk_mul_f32 v[{t}:{t+1}], v[{a}:{a+1}], s[{sC0}:{sC0+1}]
            v_pk_mul_f32 v[{t+2}:{t+3}], v[{a+2}:{a+3}], s[{sC0}:{sC0+1}]
            v_exp_f32_e64 v{t}, v{t} clamp
            v_max_f32 v{a}, s{sC1}, v{a}
            v_exp_f32_e64 v{t+1}, v{t+1} clamp
            v_max_f32 v{a+1}, s{sC1}, v{a+1}
            v_exp_f32_e64 v{t+2}, v{t+2} clamp
            v_max_f32 v{a+2}, s{sC1}, v{a+2}
            v_exp_f32_e64 v{t+3}, v{t+3} clamp
            v_max_f32 v{a+3}, s{sC1}, v{a+3}
            v_pk_add_f32 v[{t}:{t+1}], v[{t}:{t+1}], v[{a}:{a+1}]
            v_pk_add_f32 v[{t+2}:{t+3}], v[{t+2}:{t+3}], v[{a+2}:{a+3}]
            v_cvt_pk_bf16_f32 v{dst+r//2}, v{t}, v{t+1}
            v_cvt_pk_bf16_f32 v{dst+r//2+1}, v{t+2}, v{t+3}
            """)

    def relu_store(self, src, soff, off):
        out = []
        for f in range(2):
            b = src + 8*f
            for r in range(4): out.append(f"v_cvt_pk_bf16_f32 v{b+r}, v{b+2*r}, v{b+2*r+1}")
            for r in range(4): out.append(f"v_pk_max_i16 v{b+r}, v{b+r}, 0")
            out.append(f"buffer_store_dwordx4 {vr(b)}, v10, {srd(sWS)}, s{soff} offen offset:{off+1024*f} sc1")
        return out

    def consumer(self, role):
        k = self.k; c = self.c
        bars, sched, slot = self.S[role]
        ds = DS(k); self.nev = 0
        vACC, vACB, vXF, vWB = 64, 32, 128, 12
        k(f".p2align 6\nL_cons{role}:")
        nbar = [0]
        def barrier(name):
            assert bars[nbar[0]] == name, (bars[nbar[0]], name)
            k("s_barrier"); nbar[0] += 1
        M = []
        for t in range(8):
            for ks in range(4):
                for ct in range(4): M.append(dict(t=t, ks=ks, q=ct, xf=4*t+ks, acc=vACC+16*ct, first=(t == 0 and ks == 0), tr=(role == 1)))
        for u in range(4):
            for hf in range(2):
                for ks in range(4):
                    for ct in range(2): M.append(dict(t=8+u, ks=ks, q=2*hf+ct, xf=(2*u+hf)*4+ks, acc=vACB+16*ct, first=(u == 0 and hf == 0 and ks == 0), tr=True))
        xtok = {}; seen = set()
        def reads(m):
            e = M[m]; t = e["t"]
            if t not in seen:
                seen.add(t)
                if t in bars: barrier(t)
            if t < 8 and e["ks"] == 0:
                ks = e["q"]
                xtok[4*t+ks] = ds.read128(vXF + 4*(4*t+ks), 2+ks, slot[("A", t)]*SLOT)
            b = vWB + 4*(m % c.NB)
            a = slot[("W", t)]*SLOT + e["ks"]*4096
            ds.tr(b, 6+e["q"], a); e["tok"] = ds.tr(b+2, 6+e["q"], a + 1024)
        def mfma(m):
            e = M[m]
            ds.wait(max(e["tok"], xtok[e["xf"]]))
            b = vWB + 4*(m % c.NB); x = vXF + 4*e["xf"]
            A, B = (b, x) if e["tr"] else (x, b)
            k(f"v_mfma_f32_32x32x16_bf16 {vr(e['acc'],16)}, {vr(A)}, {vr(B)}, {'0' if e['first'] else vr(e['acc'],16)}")
        for m in range(c.L): reads(m)
        skipB = k.label("SKB"); joinB = k.label("JB")
        fillq = []
        for m in range(len(M)):
            if m == 128:
                if role == 1:
                    k(f"s_lshl_b32 s{sT2}, s{sJJ}, 13\ns_add_u32 s{sT1}, s{sT2}, 4096")
                    k(f"s_cmp_ge_u32 s{sJJ}, 6\ns_cbranch_scc1 {skipB}")
                    saved = (ds.n, ds.done, dict(ds.base), nbar[0], self.nev)
                    epiA = []
                    for ct in range(4): epiA += self.relu_store(vACC+16*ct, sT2 if ct < 2 else sT1, (ct & 1)*2048)
                    if c.fill: fillq = list(epiA)
                    else: k("\n".join(epiA))
                else:
                    self.epiA_qkv(ds, slot, barrier)
            if m + c.L < len(M): reads(m + c.L)
            mfma(m)
            if m >= 128:
                for _ in range(c.fill):
                    if fillq: k(fillq.pop(0))
            if role == 1 and m == 128 + c.pub_hA:
                assert not fillq
                self.publish(sFLG)
            if role == 0 and m == 128 + c.pub_kv:
                k(f"""
                s_lshl2_add_u32 s{sT0}, s{sJJ}, s{sWAVE}
                s_lshl_b32 s{sT0}, s{sT0}, 11
                s_lshl2_add_u32 s{sT0}, s{sRB}, s{sT0}
                s_add_u32 s{sT0}, s{sT0}, {WS_FLAGK}
                """)
                self.publish(sT0, 0, sTAGK)
        if role == 1:
            k(f"s_lshl_b32 s{sT2}, s{sJJ}, 12\ns_add_u32 s{sT2}, s{sT2}, {64*1024}")
            for ct in range(2): k("\n".join(self.relu_store(vACB+16*ct, sT2, ct*2048)))
            k(f"s_branch {joinB}")
            endstate = (nbar[0], self.nev)
            k(f"{skipB}:\ns_nop 9")
            ds.n, ds.done, ds.base, nbar[0], self.nev = saved
            k("\n".join(epiA))
            ds.waitall()
            noG = k.label("NG")
            k(f"s_cmp_lg_u32 s{sJJ}, 6\ns_cbranch_scc1 {noG}")
            k(f"v_lshrrev_b32 v2, 5, v1\nv_lshlrev_b32 v2, 4, v2\nv_add_u32 v2, {M_GW}, v2")
            toks = {}
            for f in range(32 + 4):
                if f < 32: toks[f] = ds.op(f"ds_read_b128 {vr(vWB+4*(f%5))}, v2 offset:{32*f}")
                if f >= 4:
                    g = f - 4
                    ds.wait(toks[g])
                    k(f"v_mfma_f32_32x32x16_bf16 {vr(vACB,16)}, {vr(vWB+4*(g%5))}, {vr(vXF+4*g)}, {'0' if g == 0 else vr(vACB,16)}")
            k(f"{noG}:")
            self.publish(sFLG)
            noG2 = k.label("NG")
            k(f"""
            s_cmp_lg_u32 s{sJJ}, 6
            s_cbranch_scc1 {noG2}
            s_nop 7
            v_mul_f32 v2, 0xbfb8aa3b, v{vACB}
            v_exp_f32 v2, v2
            v_add_f32 v2, 1.0, v2
            v_rcp_f32 v2, v2
            v_and_b32 v3, 31, v1
            v_lshlrev_b32 v3, 2, v3
            s_add_u32 s{sT0}, s{sIDX}, {WS_G}
            buffer_store_dword v2, v3, {srd(sWS)}, s{sT0} offen sc1
            {noG2}:
            """)
            while bars[nbar[0]] != 12: barrier(bars[nbar[0]])
            assert (nbar[0], self.nev) == endstate
            k(f"{joinB}:\ns_nop 1")
            ds.n = ds.done = 0
        elif c.phiq_at < 12:
            for ct in range(2): self.phi(vACB+16*ct, vACB+8*ct, 6)
        k(f"""
        s_lshr_b32 s{sT0}, s{sWAVE}, 1
        s_lshl_b32 s{sT0}, s{sT0}, 13
        v_lshlrev_b32 v2, 4, v1
        v_add_u32 v2, s{sT0}, v2
        v_mov_b32 v3, v11
        v_xor_b32 v4, 128, v11
        """)
        ds.base = {}
        vB, vA = 96, 112
        fA, fW = 128, 160
        tok = {}
        def rd2(t, kf):
            a = slot[("A", t)]*SLOT + kf*1024
            w = slot[("W", t)]*SLOT + (kf & 3)*4096
            ds.read128(fA+4*kf, 2, a)
            ds.tr(fW+4*kf, 3+(kf >> 2), w); tok[(t, kf)] = ds.tr(fW+4*kf+2, 3+(kf >> 2), w + 2048)
        def mf2(t, kf):
            ds.wait(tok[(t, kf)])
            acc = vB if t < 23 else vA
            first = kf == 0 and t in (12, 23)
            k(f"v_mfma_f32_32x32x16_bf16 {vr(acc,16)}, {vr(fW+4*kf)}, {vr(fA+4*kf)}, {'0' if first else vr(acc,16)}")
        def extras(t):
            if role == 1 and t == c.pub_hB: self.publish(sFLG, 32, sTAG, 6)
            if role == 0 and t == c.phiq_at:
                for ct in range(2): self.phi(vACB+16*ct, vACB+8*ct, 6)
            if role == 0 and t == max(self.tau(bars[bars.index(c.G) + (2 if c.Gsplit else 1)]), 12): self.o_compute(ds)
            if role == 0 and t == c.pub_o: self.publish(sFLG, 64, sTAG, 6)
            if t == 23:
                k(f"""
                s_lshr_b32 s{sT1}, s{sWAVE}, 1
                s_lshl1_add_u32 s{sT0}, s{sTB}, s{sT1}
                s_lshl_b32 s{sT1}, s{sT0}, 7
                s_add_u32 s{sT1}, s{sT1}, {WS_G}
                v_and_b32 v5, 31, v1
                v_lshlrev_b32 v6, 2, v5
                buffer_load_dword v8, v6, {srd(sWS)}, s{sT1} offen sc1
                s_lshl_b32 s{sT0}, s{sT0}, 15
                s_lshl_b32 s{sT1}, s{sCB}, 7
                s_add_u32 s{sT0}, s{sT0}, s{sT1}
                s_and_b32 s{sT1}, s{sWAVE}, 1
                s_lshl_b32 s{sT1}, s{sT1}, 6
                s_add_u32 s{sT0}, s{sT0}, s{sT1}
                v_lshrrev_b32 v6, 5, v1
                v_lshlrev_b32 v6, 4, v6
                v_lshl_add_u32 v6, v5, 10, v6
                v_add_u32 v6, s{sT0}, v6
                """)
            if t == 25:
                k("s_waitcnt vmcnt(0)\nv_sub_f32 v7, 1.0, v8")
                for r in range(16): k(f"v_mul_f32 v{vB+r}, v7, v{vB+r}")
        ds.waitall()
        barrier(12)
        for kf in range(4): rd2(12, kf)
        extras(12)
        for t in range(12, 27):
            for kf in range(8):
                if kf == 5 and t < 26:
                    ds.waitall()
                    barrier(t+1)
                mf2(t, kf)
                if kf < 4: rd2(t, kf+4)
                elif kf >= 5 and t < 26:
                    rd2(t+1, kf-5)
                    if kf == 7:
                        rd2(t+1, 3)
                        extras(t+1)
        assert nbar[0] == len(bars)
        for p in range(2):
            for r in range(8*p, 8*p+8, 2):
                k(f"v_pk_fma_f32 v[{vA+r}:{vA+r+1}], v[{vA+r}:{vA+r+1}], v[8:9], v[{vB+r}:{vB+r+1}] op_sel_hi:[1,0,1]")
            for r in range(4*p, 4*p+4):
                k(f"v_cvt_pk_bf16_f32 v{64+r}, v{vA+2*r}, v{vA+2*r+1}")
            k(f"v_permlane32_swap_b32 v{64+4*p}, v{64+4*p+2}\nv_permlane32_swap_b32 v{64+4*p+1}, v{64+4*p+3}")
            k(f"buffer_store_dwordx4 {vr(64+4*p)}, v6, {srd(sOUT)}, 0 offen offset:{32*p} {c.outaux}")
        if c.stamps:
            k(f"s_waitcnt vmcnt(0)\ns_memrealtime s[{sST}:{sST+1}]\ns_waitcnt lgkmcnt(0)\nv_writelane_b32 v0, s{sST}, 40")
            for e in range(self.nev): k(f"v_writelane_b32 v0, s{80+2*e}, {41+e}")
            self.stamp_addr(2)
            k(f"global_store_dword v2, v0, s[{pWS}:{pWS+1}]")
        k("s_endpgm")

    def epiA_qkv(self, ds, slot, barrier):
        k = self.k
        def mf(D, A, B, first): k(f"v_mfma_f32_32x32x16_bf16 {vr(D,16)}, {vr(A)}, {vr(B)}, {'0' if first else vr(D,16)}")
        self.phi(64, 64, 2)
        for ct in (2, 3):
            for r in range(8): k(f"v_cvt_pk_bf16_f32 v{32+8*ct+r}, v{64+16*ct+2*r}, v{64+16*ct+2*r+1}")
        k(f"""
        v_and_b32 v2, 4, v1
        v_cmp_eq_u32 vcc, 0, v2
        v_mov_b32 v2, 0x3f803f80
        """)
        mf(96, 64, 48, True); mf(96, 68, 52, False)
        k("v_cndmask_b32 v72, 0, v2, vcc\nv_xor_b32 v76, v72, v2")
        for i in (1, 2, 3): k(f"v_mov_b32 v{72+i}, v72\nv_mov_b32 v{76+i}, v76")
        mf(32, 72, 64, True); mf(32, 72, 68, False)
        self.phi(80, 80, 2)
        mf(112, 80, 56, True); mf(112, 84, 60, False)
        mf(32, 76, 80, False); mf(32, 76, 84, False)
        S = slot["S"]*SLOT
        k(f"""
        s_lshl_b32 s{sT0}, s{sWAVE}, 12
        s_add_u32 s{sT0}, s{sT0}, {S}
        v_lshlrev_b32 v2, 4, v1
        v_add_u32 v3, s{sT0}, v2
        s_lshl_b32 s{sT0}, s{sWAVE}, 8
        s_add_u32 s{sT0}, s{sT0}, {M_ZST}
        v_lshlrev_b32 v4, 2, v1
        v_add_u32 v5, s{sT0}, v4
        """)
        for T in range(2):
            for q in range(2):
                for r in range(4*q, 4*q+4):
                    k(f"v_cndmask_b32 v{96+16*T+r}, v{96+16*T+r}, v{96+16*T+8+r}, s[{sMASK16}:{sMASK16+1}]")
                ds.op(f"ds_write_b128 v3, {vr(96+16*T+4*q)} offset:{(2*T+q)*1024}")
        ds.op(f"ds_write_b32 v5, v32")
        k(f"""
        s_lshl_b32 s{sT0}, s{sWAVE}, 10
        s_add_u32 s{sT1}, s{sT0}, {S}
        v_add_u32 v3, s{sT1}, v2
        v_add_u32 v5, {M_ZST}, v4
        """)
        if self.c.kvatom:
            k(f"""
            s_lshl2_add_u32 s{sT0}, s{sJJ}, s{sWAVE}
            s_mul_i32 s{sT0}, s{sT0}, 1152
            s_add_u32 s{sT0}, s{sT0}, {WS_KVA}
            v_mov_b32 v2, v4
            """)
        else:
            k(f"""
            s_lshl4_add_u32 s{sT0}, s{sJJ}, s{sRB}
            s_mul_i32 s{sT0}, s{sT0}, {KVP_STRIDE}
            s_add_u32 s{sT0}, s{sT0}, {WS_KVP}
            s_mul_i32 s{sT1}, s{sWAVE}, 1152
            s_add_u32 s{sT0}, s{sT0}, s{sT1}
            """)
        k(f"""
        v_lshrrev_b32 v88, 4, v1
        v_cmp_eq_u32 vcc, s{sWAVE}, v88
        v_and_b32 v4, 60, v4
        v_mov_b32 v88, 0x80000000
        v_cndmask_b32 v4, v88, v4, vcc
        """)
        ds.waitall()
        barrier("8x")
        for w in range(4): ds.op(f"ds_read_b128 {vr(96+4*w)}, v3 offset:{w*4096}")
        t1 = ds.n
        for w in range(4): ds.op(f"ds_read_b32 v{112+w}, v5 offset:{w*256}")
        ds.wait(t1)
        for e in (0, 2):
            k(f"v_pk_add_f32 v[{96+e}:{97+e}], v[{96+e}:{97+e}], v[{100+e}:{101+e}]\nv_pk_add_f32 v[{104+e}:{105+e}], v[{104+e}:{105+e}], v[{108+e}:{109+e}]")
        for e in (0, 2): k(f"v_pk_add_f32 v[{96+e}:{97+e}], v[{96+e}:{97+e}], v[{104+e}:{105+e}]")
        if self.c.kvatom:
            for e in range(4): k(f"buffer_atomic_add_f32 v{96+e}, v2, {srd(sWS)}, s{sT0} offen offset:{256*e}")
        else:
            k(f"buffer_store_dwordx4 {vr(96)}, v2, {srd(sWS)}, s{sT0} offen sc1")
        ds.waitall()
        barrier("8y")
        k("v_pk_add_f32 v[112:113], v[112:113], v[114:115]\nv_add_f32 v112, v112, v113")
        if self.c.kvatom: k(f"buffer_atomic_add_f32 v112, v4, {srd(sWS)}, s{sT0} offen offset:1024")
        else: k(f"buffer_store_dword v112, v4, {srd(sWS)}, s{sT0} offen offset:1024 sc1")

    def o_compute(self, ds):
        k = self.k
        self.ev()
        k(f"""
        v_lshlrev_b32 v6, 4, v1
        v_add_u32 v6, {M_KVF}, v6
        v_lshrrev_b32 v7, 5, v1
        v_lshlrev_b32 v7, 4, v7
        v_add_u32 v7, {M_ZF}, v7
        """)
        toks = []
        for T in range(2):
            for f in range(2):
                k(f"v_add_u32 v8, {1024*T}, v6\nv_add_u32 v9, {64*T+32*f}, v7")
                if f == 0: k(f"v_cndmask_b32 v8, v8, v9, s[{sMASK16}:{sMASK16+1}]")
                else: k(f"v_cndmask_b32 v8, v9, v8, s[{sMASK16}:{sMASK16+1}]")
                toks.append(ds.op(f"ds_read_b128 {vr(12+4*(2*T+f))}, v8"))
        k(f"s_lshl_b32 s{sT0}, s{sJJ}, 12\ns_add_u32 s{sT0}, s{sT0}, {88*1024}")
        D = [64, 80, 192, 208]
        for h in range(4):
            ds.wait(toks[h])
            k(f"v_mfma_f32_32x32x16_bf16 {vr(D[h],16)}, {vr(12+4*h)}, {vr(32+4*h)}, 0")
        for h in range(4):
            f = h & 1
            num = D[h] + 8*f; den = D[h] + 8*(1-f)
            k(f"v_add_f32 v{den}, s{sC1}, v{den}\nv_rcp_f32 v{den}, v{den}")
            for r in range(0, 8, 2): k(f"v_pk_mul_f32 v[{num+r}:{num+r+1}], v[{num+r}:{num+r+1}], v[{den}:{den+1}] op_sel_hi:[1,0]")
            for r in range(4): k(f"v_cvt_pk_bf16_f32 v{num+r}, v{num+2*r}, v{num+2*r+1}")
            k(f"buffer_store_dwordx4 {vr(num)}, v10, {srd(sWS)}, s{sT0} offen offset:{1024*h} sc1")

    def build(self, path):
        k = self.k
        self.prologue()
        self.loader_common()
        k("s_branch L_load0")
        self.consumer_common()
        self.loader(0); self.loader(1)
        self.consumer(0); self.consumer(1)
        k("L_end:\ns_endpgm")
        k.lines, n = hazard.pad(k.lines)
        if self.c.align: k.pre = ".p2align 12\n.fill 832, 4, 0xbf800000\n"
        emit(path, [k])
        return n

def make(path, **kw):
    c = Cfg()
    for a, b in kw.items():
        assert hasattr(c, a), a
        setattr(c, a, b)
    g = Gen(c)
    n = g.build(path)
    return g, n

def show(g):
    for role in (0, 1):
        bars, sched, slot = g.S[role]
        print("role", role, " | ".join(f"{bars[i-1] if i else 's'}:" + ",".join(f"{a}{t}" for a, t in it) for i, it in enumerate(sched)))

if __name__ == "__main__":
    base = dict(firstA2={0: 8.5, 1: 9}, nW2pre=4, cap={(0, 8): 3}, kvatom=True, st_plan={}, vt=None)
    V = dict(
      a=dict(dt=(1, False), w2t=7),
      b=dict(dt=(1, False), w2t=7, thr=4),
      c=dict(dt=(3, False), vt=(2, 1, 1, 2, 0), w2t=7, thr=4),
      d=dict(dt=(1, True), st_first=9, st_n=2, st_plan={i: 1 for i in range(8)}, thr=4),
      e=dict(vt=(0, 8, 0, 8, 0), w2t=7, thr=4),
      f=dict(dt=(1, False), w2t=7, thr=6),
    )
    g, n = make("k5.s", **{**base, **V["b"]}); show(g)
    for nm, kw in V.items(): make(f"k5s_{nm}.s", stamps=True, **{**base, **kw})
```

```python
import mkprobe, gen5
base = dict(firstA2={0: 8.5, 1: 9}, nW2pre=4, cap={(0, 8): 3}, kvatom=True, st_plan={}, vt=None)
e = dict(base, vt=(0, 8, 0, 8, 0))
mkprobe.build(gen5, "p_e_z.s", 0, 0, 4, 4, mode="mean", **e)
mkprobe.build(gen5, "p_e_b0.s", 0, 1, 4, 4, mode="mean", **e)
mkprobe.build(gen5, "p_e_b7.s", 0, 8, 4, 4, mode="mean", **e)
mkprobe.build(gen5, "p_n_z.s", 0, 0, 4, 4, mode="mean", **base)
mkprobe.build(gen5, "p_n_b0.s", 0, 1, 4, 4, mode="mean", **base)
mkprobe.build(gen5, "p_n_b7.s", 0, 8, 4, 4, mode="mean", **base)
gen5.make("k5s_pe.s", stamps=True, **e); gen5.make("k5s_pn.s", stamps=True, **base)
```

```python
import sys
from asmlib import *
import hazard

WS_EPA   = 0
WS_EPK   = 2048
WS_G     = 8192
WS_KVA   = 16384
WS_FLAGA = 786432
WS_FLAGK = 851968
WS_KVP   = 131072
KVP_STRIDE = 4608
WS_A2    = 1 << 20
A2_TG    = 120 * 1024
WS_USED  = WS_A2 + 64 * A2_TG
WS_STAMP = 16 << 20

SLOT = 16384
NSLOT = 9
MISC = NSLOT * SLOT
M_ZST = MISC
M_KVF = MISC + 1024
M_ZF  = MISC + 3072
M_GW  = MISC
LDS_BYTES = MISC + 4096

sPFS = 3
sPF, sX, sW1, sW2, sWO, sWS, sOUT, sGW = 4, 8, 12, 16, 20, 24, 28, 32
pX, pWQ, pWO, pW1, pW2, pGW, pOUT, pDBG, pWS = 36, 38, 40, 44, 46, 48, 50, 52, 54
sWAVE, sRB, sROLE, sJJ, sTB, sCB, sROT, sROT2, sTAG, sBUD = 56, 57, 58, 59, 60, 61, 62, 63, 64, 65
sLW, sT0, sT1, sT2, sFLG, sW01, sFB0, sFB1 = 66, 67, 68, 69, 70, 71, 72, 73
sMASK16 = 74
sP64, sCBB = 74, 75
sRDY, sIDX, sTAGK, sPFO = 76, 77, 78, 79
sKF = 36
sFG = [80, 88, 44]
sPITCH, sHA, sCBA, sIS = 28, 29, 30, 31
sC0, sC1 = 52, 42
sST = 96
sSB, sSS, sSO, sSD = 80, 82, 84, 90

def srd(b): return f"s[{b}:{b+3}]"
def vr(b, n=4): return f"v[{b}:{b+n-1}]"

class Cfg:
    L = 4; NB = 5
    mapping = "A"
    G = 12; pub_o = 15; pub_hB = 13
    pub_hA = 40
    pub_kv = 12
    firstA2 = {0: 10, 1: 10}
    nW2pre = 5
    npro = 4
    cap = {}
    fill = 3
    phiq_at = 12
    stamps = False
    rot = False; rot2 = "jj"; own = True
    prio = True; touch = True; ctouch = True; align = True
    outaux = ""
    a2aux = "sc1"
    keepB = {0: (), 1: (9, 11)}
    kvatom = False
    Glast = False
    cap2 = 3
    Gsplit = False
    vt = (2, 2, 1, 3, 2)
    st_first = 4
    st_cons = 0
    st_plan = {-1: 1, 0: 1, 1: 1, 2: 1, 3: 1, 4: 1, 5: 1, 6: 1}

class DS:
    def __init__(self, k):
        self.k = k; self.n = 0; self.done = 0; self.base = {}
    def addr(self, v, a):
        b = self.base.get(v, 0)
        if not (0 <= a - b <= 65535):
            nb = min(a & ~0x3fff, 98304)
            self.k(f"v_add_u32 v{v}, {(nb - b) & 0xffffffff}, v{v}")
            self.base[v] = b = nb
        return a - b
    def op(self, text):
        while self.n - self.done >= 15: self.wait(self.done + 1)
        self.k(text); self.n += 1; return self.n
    def read128(self, dst, v, a):
        o = self.addr(v, a); return self.op(f"ds_read_b128 {vr(dst)}, v{v} offset:{o}")
    def tr(self, dst, v, a):
        o = self.addr(v, a); return self.op(f"ds_read_b64_tr_b16 v[{dst}:{dst+1}], v{v} offset:{o}")
    def wait(self, tok):
        if tok > self.done:
            self.k(f"s_waitcnt lgkmcnt({self.n - tok})"); self.done = tok
    def waitall(self): self.wait(self.n)

class Gen:
    def __init__(self, cfg):
        self.c = cfg
        self.k = K(KN + "_kernel", 256, 512, LDS_BYTES, vgpr=256, sgpr=102)
        self.S = {r: self.schedule(r) for r in (0, 1)}

    def tau(self, b): return {"8x": 8.3, "8y": 8.6}.get(b, b)
    def bars_of(self, role):
        return list(range(9)) + (["8x", "8y"] if role == 0 else []) + list(self.c.keepB[role]) + list(range(12, 27))
    def pub_bar(self, role, m):
        nat = 8 + (m + self.c.L) // 16
        return max(self.tau(b) for b in self.bars_of(role) if self.tau(b) < nat + 1)
    def schedule(self, role):
        c = self.c; tau = self.tau
        bars = self.bars_of(role)
        needbar = {}
        for t in range(27):
            needbar[t] = t if t in bars else ("8x" if (role == 0 and not [b for b in c.keepB[0] if b <= t]) else max(b for b in bars if b not in ("8x", "8y") and b <= t))
        pos = {b: i for i, b in enumerate(bars)}
        order = []
        for t in range(8): order += [("A", t), ("W", t)]
        order += [("W", t) for t in range(8, 12 + c.nW2pre)]
        a, w = 12, 12 + c.nW2pre
        while a < 27 or w < 27:
            if a < 27: order.append(("A", a)); a += 1
            if a < w - 1 and a < 27: order.append(("A", a)); a += 1
            if w < 27 and w <= a + 2: order.append(("W", w)); w += 1
        pubA = self.pub_bar(1, c.pub_hA)
        def freebar(it):
            kind, t = it
            if role == 0 and it == ("W", 7): return "8x"
            f = t + 1 if (kind == "A" or t >= 11) else t + 2
            return min([b for b in bars if tau(b) >= f], key=tau, default=None)
        def allowed(it, cur, nxt):
            kind, t = it
            if kind == "W" or t < 8: return True
            if t == 12 and role == 1 and c.own: return cur > pubA and cur >= c.firstA2[role]
            if t < 20: return nxt > pubA and cur >= c.firstA2[role]
            if t < 23: return nxt > c.pub_hB
            return nxt > c.pub_o
        assert tau(self.bars_of(0)[self.bars_of(0).index(c.G) + 1]) > self.pub_bar(0, c.pub_kv)
        free = list(range(NSLOT)); rel = {}; slot = {}; sched = []; qi = 0
        for i in range(len(bars) + 1):
            cur = bars[i - 1] if i > 0 else -1
            nxt = tau(bars[i]) if i < len(bars) else 99
            if i > 0: free += rel.pop(cur, [])
            if role == 0 and cur == 8:
                slot["S"] = free.pop(0); rel.setdefault("8y", []).append(slot["S"])
            dflt = {"8x": 0, "8y": 9}.get(cur, 2 * max(1, int(nxt) - int(tau(cur))))
            if tau(cur) >= 11: dflt = c.cap2
            cap = c.npro if i == 0 else c.cap.get((role, cur), dflt)
            items = []
            while qi < len(order) and free and len(items) < cap and allowed(order[qi], tau(cur), nxt):
                it = order[qi]; qi += 1
                slot[it] = free.pop(0)
                rel.setdefault(freebar(it), []).append(slot[it])
                items.append(it)
            sched.append(items)
        assert qi == len(order), (role, order[qi:])
        for i, items in enumerate(sched):
            for (kind, t) in items: assert i <= pos[needbar[t]], (role, kind, t, i)
        self.needbar = getattr(self, "needbar", {}); self.needbar[role] = needbar
        return bars, sched, slot

    def mk_srd(self, b, p, nbytes):
        self.k(f"s_mov_b32 s{b}, s{p}\ns_mov_b32 s{b+1}, s{p+1}\ns_mov_b32 s{b+2}, {nbytes}\ns_mov_b32 s{b+3}, 0x20000")
    def epoch_load(self):
        self.k(f"""
        s_lshl_b32 s{sTAG}, s{sRB}, 7
        s_lshl_b32 s{sTAGK}, s{sJJ}, 7
        s_add_u32 s{sTAGK}, s{sTAGK}, {WS_EPK}
        s_load_dword s{sTAG}, s[{pWS}:{pWS+1}], s{sTAG}
        s_load_dword s{sTAGK}, s[{pWS}:{pWS+1}], s{sTAGK}
        """)
    def epoch_tag(self):
        self.k("s_waitcnt lgkmcnt(0)")
        for r in (sTAG, sTAGK):
            self.k(f"s_mul_i32 s{r}, s{r}, 1664525\ns_add_u32 s{r}, s{r}, 1013904223")
    def stamp_addr(self, vtmp):
        self.k(f"""
        s_lshl_b32 s{sT0}, s2, 3
        s_add_u32 s{sT0}, s{sT0}, s{sWAVE}
        s_lshl_b32 s{sT0}, s{sT0}, 8
        s_add_u32 s{sT0}, s{sT0}, {WS_STAMP}
        v_lshlrev_b32 v{vtmp}, 2, v1
        v_add_u32 v{vtmp}, s{sT0}, v{vtmp}
        """)

    def prologue(self):
        k = self.k; c = self.c
        if c.stamps: k(f"s_memrealtime s[{sST}:{sST+1}]")
        k(f"""
        s_cmp_ge_u32 s2, 256
        s_cbranch_scc1 L_end
        s_load_dwordx16 s[36:51], s[0:1], 0
        s_load_dwordx4 s[52:55], s[0:1], 64
        v_lshrrev_b32 v1, 6, v0
        s_and_b32 s{sT0}, s2, 7
        v_readfirstlane_b32 s{sWAVE}, v1
        v_and_b32 v1, 63, v0
        s_lshr_b32 s{sT1}, s2, 3                ; idx
        """)
        if c.mapping == "A":
            k(f"""
            s_lshr_b32 s{sRB}, s{sT0}, 1
            s_lshl_b32 s{sRB}, s{sRB}, 2
            s_lshr_b32 s{sT2}, s{sT1}, 3
            s_add_u32 s{sRB}, s{sRB}, s{sT2}
            s_and_b32 s{sROLE}, s{sT1}, 1
            s_and_b32 s{sT0}, s{sT0}, 1
            s_bfe_u32 s{sJJ}, s{sT1}, 0x20001
            s_lshl2_add_u32 s{sJJ}, s{sT0}, s{sJJ}
            s_lshl1_add_u32 s{sTB}, s{sRB}, s{sT0}
            s_and_b32 s{sCB}, s{sT1}, 7
            s_lshl_b32 s{sROT}, s{sT2}, 1
            s_xor_b32 s{sROT}, s{sROT}, s{sCB}
            """)
        else:
            k(f"""
            s_lshr_b32 s{sRB}, s{sT0}, 2
            s_lshl_b32 s{sRB}, s{sRB}, 3
            s_lshr_b32 s{sT2}, s{sT1}, 2
            s_add_u32 s{sRB}, s{sRB}, s{sT2}
            s_and_b32 s{sROLE}, s{sT1}, 1
            s_and_b32 s{sT0}, s{sT0}, 3
            s_bfe_u32 s{sJJ}, s{sT1}, 0x10001
            s_lshl1_add_u32 s{sJJ}, s{sT0}, s{sJJ}
            s_and_b32 s{sTB}, s{sT0}, 1
            s_lshl1_add_u32 s{sTB}, s{sRB}, s{sTB}
            s_and_b32 s{sCB}, s{sT1}, 3
            s_lshl_b32 s{sROT}, s{sCB}, 1
            s_xor_b32 s{sROT}, s{sROT}, s{sT2}
            s_lshr_b32 s{sT0}, s{sT0}, 1
            s_lshl2_add_u32 s{sCB}, s{sT0}, s{sCB}
            """)
        if c.rot2 == "jj": k(f"s_mov_b32 s{sROT2}, s{sJJ}")
        elif c.rot2 == "rot": k(f"s_mov_b32 s{sROT2}, s{sROT}")
        else: k(f"s_mov_b32 s{sROT2}, 0")
        if c.rot is False: k(f"s_mov_b32 s{sROT}, 0")
        elif c.rot is not True: k(f"s_and_b32 s{sROT}, s{sROT}, {c.rot}")
        k(f"""
        s_cmp_lt_u32 s{sWAVE}, 4
        s_cbranch_scc1 L_consumer
        """)

    vX, vWA, vWB, vW2, vA2, vT = 4, 8, 12, 16, 20, 21
    def l_commit(self, slow):
        if not self.c.stamps or self.pend is None: return
        i = self.pend; self.pend = None
        if slow: self.k("s_sleep 3")
        self.k(f"v_writelane_b32 v3, s96, {1+i}\nv_writelane_b32 v2, s98, {i}\nv_writelane_b32 v2, s100, {32+i}")
    def l_issue(self, it, slot):
        k = self.k; c = self.c
        kind, t = it; s = t - 12
        if kind == "A" and t >= 12: self.flag_need(s)
        k(f"s_add_u32 m0, s{sLW}, {slot[it]*SLOT}")
        aux = ""
        if kind == "A" and t < 8:
            k(f"s_xor_b32 s{sT1}, s{sROT}, {t}\ns_lshl_b32 s{sT1}, s{sT1}, 7"); v, r = self.vX, sX
        elif kind == "W" and t < 8:
            k(f"s_xor_b32 s{sT1}, s{sROT}, {t}\ns_mul_i32 s{sT1}, s{sT1}, s{sP64}"); v, r = self.vWA, sW1
        elif kind == "W" and t < 12:
            k(f"s_and_b32 s{sT1}, s{sROT}, 6\ns_xor_b32 s{sT1}, s{sT1}, {2*(t-8)}\ns_mul_i32 s{sT1}, s{sT1}, s{sP64}"); v, r = self.vWB, sW1
        elif kind == "W":
            if s < 8: k(f"s_xor_b32 s{sT1}, s{sROT2}, {s}\ns_lshl_b32 s{sT1}, s{sT1}, 17")
            else: k(f"s_mov_b32 s{sT1}, {(s if s < 11 else s-11) << 17}")
            v, r = self.vW2, (sW2 if s < 11 else sWO)
        else:
            if s < 8: k(f"s_xor_b32 s{sT1}, s{sROT2}, {s}\ns_lshl_b32 s{sT1}, s{sT1}, 13")
            else: k(f"s_mov_b32 s{sT1}, {s << 13}")
            v, r, aux = self.vA2, sWS, c.a2aux
        for i in range(4):
            vv = v if v == self.vA2 else v + i
            k(f"buffer_load_dwordx4 v{vv}, {srd(r)}, s{sT1} offen offset:{i*1024} {aux} lds")
            self.vm.append(it)
    def l_touch(self):
        vT = self.vT
        self.k(f"buffer_load_dword v{vT+7}, v{vT+6}, {srd(sPF)}, s{sPFO} offen\ns_add_u32 s{sPFO}, s{sPFO}, s{sPFS}")
        self.vm.append("X")
    def l_barrier(self, i, nb, nitems, role=0):
        k = self.k; c = self.c; vm = self.vm
        self.l_commit(nitems < 2)
        if c.stamps: k("s_memrealtime s[98:99]")
        last = max([j for j, x in enumerate(vm) if x != "X" and self.needbar[role][x[1]] == nb], default=-1)
        if last >= 0: k(f"s_waitcnt vmcnt({len(vm) - 1 - last})")
        if c.stamps: k("s_memrealtime s[100:101]")
        k("s_barrier")
        if c.stamps: k("s_memrealtime s[96:97]"); self.pend = i

    NCOMMON = 9
    def loader_common(self):
        k = self.k; c = self.c
        vX, vWA, vWB, vW2, vA2, vT = self.vX, self.vWA, self.vWB, self.vW2, self.vA2, self.vT
        bars, sched, slot = self.S[0]
        for i in range(self.NCOMMON):
            assert sched[i] == self.S[1][1][i] and all(slot[x] == self.S[1][2][x] for x in sched[i])
        self.vm = []; self.pend = None
        k(f"""
        s_sub_u32 s{sT2}, s{sWAVE}, 4          ; w
        s_lshl_b32 s{sLW}, s{sT2}, 12
        v_lshrrev_b32 v{vT}, 3, v1
        v_lshrrev_b32 v{vT+1}, 4, v1
        v_and_b32 v{vT+2}, 7, v1
        v_xor_b32 v{vT+2}, v{vT+2}, v{vT+1}
        v_lshlrev_b32 v{vT+2}, 4, v{vT+2}
        v_lshl_add_u32 v{vT+2}, v{vT}, 10, v{vT+2}
        s_lshl2_add_u32 s{sT0}, s{sRB}, s{sT2}
        s_lshl_b32 s{sT0}, s{sT0}, 15
        v_add_u32 v{vX}, s{sT0}, v{vT+2}
        v_xor_b32 v{vX+1}, 64, v{vX}
        v_add_u32 v{vX+2}, {2*7168}, v{vX}
        v_add_u32 v{vX+3}, {3*7168}, v{vX+1}
        v_add_u32 v{vX+1}, {7168}, v{vX+1}
        s_lshl_b32 s{sCBB}, s{sJJ}, 7
        s_add_u32 s{sCBA}, s{sCBB}, 1024
        s_movk_i32 s{sPITCH}, 3072
        s_movk_i32 s{sHA}, 1024
        s_cmp_eq_u32 s{sROLE}, 0
        s_cbranch_scc1 L_par0
        s_lshl_b32 s{sCBA}, s{sJJ}, 8
        s_add_u32 s{sCBB}, s{sCBB}, 2048
        s_movk_i32 s{sPITCH}, 2752
        s_movk_i32 s{sHA}, 128
        L_par0:
        s_lshl_b32 s{sP64}, s{sPITCH}, 6
        s_lshl_b32 s{sIS}, s{sPITCH}, 2
        s_sub_u32 s{sIS}, s{sIS}, 1024
        v_bfe_u32 v{vT+2}, v1, 2, 2
        v_xor_b32 v{vT+2}, v{vT+2}, v{vT+1}
        v_and_b32 v{vT+3}, 1, v{vT+2}
        v_lshlrev_b32 v{vT+3}, 6, v{vT+3}
        v_and_b32 v{vT}, 3, v1
        v_lshl_add_u32 v{vT+3}, v{vT}, 4, v{vT+3}
        v_lshrrev_b32 v{vT+2}, 1, v{vT+2}      ; half
        s_lshl_b32 s{sT0}, s{sT2}, 4
        v_add_u32 v{vT+1}, s{sT0}, v{vT+1}     ; R (i=0)
        v_mad_u32_u24 v{vT+4}, v{vT+1}, s{sPITCH}, v{vT+3}
        v_mad_u32_u24 v{vWA}, v{vT+2}, s{sHA}, v{vT+4}
        v_add_u32 v{vWA}, s{sCBA}, v{vWA}
        v_add_u32 v{vWA+1}, s{sIS}, v{vWA}
        v_add_u32 v{vWA+2}, s{sIS}, v{vWA+1}
        v_add_u32 v{vWA+3}, s{sIS}, v{vWA+2}
        s_mov_b32 s{sX+2}, {2048*1024}
        s_mov_b32 s{sX+3}, 0x20000
        s_lshl_b32 s{sW1+2}, s{sPITCH}, 9
        s_mov_b32 s{sW1+3}, 0x20000
        """)
        if c.vt: self.touch_setup_pre()
        k(f"""
        s_cmp_eq_u32 s{sROLE}, 0
        s_waitcnt lgkmcnt(0)
        s_mov_b32 s{sX}, s{pX}
        s_mov_b32 s{sX+1}, s{pX+1}
        s_cselect_b32 s{sW1}, s{pWQ}, s{pW1}
        s_cselect_b32 s{sW1+1}, s{pWQ+1}, s{pW1+1}
        """)
        items = sched[0]
        self.st_next = c.st_cons
        for n, it in enumerate(items):
            if c.vt and n == c.vt[4]: self.touch_go()
            if n == 3:
                if c.stamps: k(f"v_mov_b32 v3, 0\nv_mov_b32 v2, 0\nv_writelane_b32 v3, s{sST}, 0")
                self.epoch_load()
            self.l_issue(it, slot)
        if c.vt and c.vt[4] >= len(items): self.touch_go()
        self.epoch_tag()
        if c.st_plan:
            self.st_setup(sT2, c.st_first + c.st_cons)
            for _ in range(c.st_plan.get(-1, 0)): self.st_unit(sT2)
        self.l_barrier(0, 0, 2)
        for i in range(1, self.NCOMMON):
            cur = bars[i-1]
            for it in sched[i]: self.l_issue(it, slot)
            for _ in range(c.st_plan.get(cur, 0)): self.st_unit(sT2)
            if cur == 0:
                k(f"""
                s_mov_b32 s{sBUD}, 0x8000
                s_and_b32 s{sW01}, s{sT2}, 1
                s_and_b32 s{sT1}, s{sROT}, 1
                v_xor_b32 v{vT+5}, s{sT1}, v{vT+2}
                v_mad_u32_u24 v{vWB}, v{vT+5}, s{sP64}, v{vT+4}
                v_add_u32 v{vWB}, s{sCBB}, v{vWB}
                v_add_u32 v{vT+5}, s{sCBB}, v{vT+3}
                v_cmp_le_u32 vcc, s{sPITCH}, v{vT+5}
                v_mov_b32 v{vT+5}, 0x80000000
                v_cndmask_b32 v{vWB}, v{vWB}, v{vT+5}, vcc
                v_add_u32 v{vWB+1}, s{sIS}, v{vWB}
                v_add_u32 v{vWB+2}, s{sIS}, v{vWB+1}
                v_add_u32 v{vWB+3}, s{sIS}, v{vWB+2}
                v_lshl_add_u32 v{vW2}, v{vT+1}, 10, v{vT+3}
                v_lshl_add_u32 v{vW2}, v{vT+2}, 16, v{vW2}
                s_lshl_b32 s{sT0}, s{sCB}, 7
                v_add_u32 v{vW2}, s{sT0}, v{vW2}
                v_add_u32 v{vW2+1}, 3072, v{vW2}
                v_add_u32 v{vW2+2}, 6144, v{vW2}
                v_add_u32 v{vW2+3}, 9216, v{vW2}
                """)
            if cur == 1:
                k(f"""
                s_lshr_b32 s{sT0}, s{sT2}, 1
                s_lshl1_add_u32 s{sT0}, s{sTB}, s{sT0}       ; tg
                s_lshl3_add_u32 s{sT1}, s{sT0}, s{sCB}
                s_lshl_b32 s{sT1}, s{sT1}, 7
                s_add_u32 s{sT1}, s{sT1}, {WS_FLAGA}
                s_mov_b32 s{sRDY}, 0
                s_add_u32 s{sFB0}, s{pWS}, s{sT1}
                s_addc_u32 s{sFB1}, s{pWS+1}, 0
                s_mul_i32 s{sT0}, s{sT0}, {A2_TG}
                s_lshl_b32 s{sT1}, s{sW01}, 12
                s_add_u32 s{sT0}, s{sT0}, s{sT1}
                s_add_u32 s{sT0}, s{sT0}, {WS_A2}
                v_lshlrev_b32 v{vA2}, 4, v1
                v_add_u32 v{vA2}, s{sT0}, v{vA2}
                """)
                self.mk_srd(sW2, pW2, 1376*1024)
                self.mk_srd(sWO, pWO, 512*1024)
                self.mk_srd(sWS, pWS, WS_USED)
            if cur == 3:
                self.mk_srd(sGW, pGW, 1024)
                k(f"""
                s_lshl_b32 s{sT0}, s{sROT}, 3
                v_xor_b32 v{vT+5}, s{sT0}, v1
                v_lshlrev_b32 v{vT+5}, 4, v{vT+5}
                s_mov_b32 m0, {M_GW}
                buffer_load_dwordx4 v{vT+5}, {srd(sGW)}, 0 offen lds
                """)
                self.vm.append(("W", 7))
            if i == self.NCOMMON - 1:
                k(f"s_cmp_eq_u32 s{sROLE}, 0\ns_cbranch_scc0 L_load1")
                self.common_state = (list(self.vm), self.pend)
            else:
                self.l_barrier(i, bars[i], len(sched[i]))

    def loader(self, role):
        k = self.k; c = self.c; vT = self.vT
        bars, sched, slot = self.S[role]
        self.vm, self.pend = list(self.common_state[0]), self.common_state[1]
        k(f"L_load{role}:")
        i0 = self.NCOMMON - 1
        self.l_barrier(i0, bars[i0], len(sched[i0]), role)
        first_int = {}
        for i, items in enumerate(sched):
            for (kind, t) in items:
                if kind == "A" and t in (12, 20, 23): first_int[i] = {12: 0, 20: 1, 23: 2}[t]
        Gi = bars.index(c.G) + 1 if role == 0 else 99
        assert min(first_int) > i0 + 1 and Gi > i0 + 1
        k("s_waitcnt lgkmcnt(0)")
        for i in range(i0 + 1, len(sched)):
            items = sched[i]; cur = bars[i-1]
            gathered = role == 0 and cur == c.G
            if gathered and not c.Glast: self.kv_gather_issue()
            if role == 1 and c.own and ("A", 12) in items:
                assert c.rot2 == "jj"
                k(f"s_bitset1_b32 s{sRDY}, s{sJJ}")
            for it in items: self.l_issue(it, slot)
            if gathered and c.Glast: self.kv_gather_issue()
            if role == 0 and i == Gi + (1 if c.Gsplit else 0): self.kv_gather_finish()
            if role == 0 and c.kvatom and cur == 8: self.kv_zero_wait()
            if cur == 22: self.flag_need("gate")
            if i + 1 in first_int: self.flag_load(first_int[i+1])
            if role == 0 and i + 1 == Gi: self.kv_flag_load()
            if i < len(bars): self.l_barrier(i, bars[i], len(items), role)
        self.l_commit(True)
        l = k.label("EP")
        if role == 0:
            k(f"""
            s_cmp_lg_u32 s{sRB}, 0
            s_cbranch_scc1 {l}
            s_lshl_b32 s{sT0}, s{sJJ}, 7
            s_add_u32 s{sT0}, s{sT0}, {WS_EPK}
            v_mov_b32 v{vT}, s{sTAGK}
            """)
        else:
            k(f"""
            s_cmp_lg_u32 s{sJJ}, 0
            s_cbranch_scc1 {l}
            s_lshl_b32 s{sT0}, s{sRB}, 7
            v_mov_b32 v{vT}, s{sTAG}
            """)
        k(f"""
        s_cmp_lg_u32 s{sWAVE}, 4
        s_cbranch_scc1 {l}
        s_mov_b64 exec, 1
        buffer_store_dword v{vT}, off, {srd(sWS)}, s{sT0} sc1
        s_mov_b64 exec, -1
        {l}:
        """)
        if c.stamps:
            k(f"v_writelane_b32 v3, s{sROLE}, 63")
            self.stamp_addr(vT+1)
            k(f"global_store_dword v{vT+1}, v3, s[{pWS}:{pWS+1}]\nv_add_u32 v{vT+1}, {1<<20}, v{vT+1}\nglobal_store_dword v{vT+1}, v2, s[{pWS}:{pWS+1}]")
        k("s_endpgm")

    def touch_setup_pre(self):
        k = self.k; vT = self.vT
        xa, xn, wa, wn, _ = self.c.vt
        l1 = k.label("TS")
        n1 = -(-43 * wn // 8) + 1
        k(f"""
        s_mul_i32 s{sT1}, s2, {6*wn}
        s_add_u32 s{sT1}, s{sT1}, {wa*1536}
        s_mov_b32 s{sT0}, {6*wn}
        s_mul_i32 s{sPFO}, s2, {43*wn}
        s_lshr_b32 s{sPFO}, s{sPFO}, 3
        s_add_u32 s{sPFO}, s{sPFO}, {wa*1376}
        s_cmp_eq_u32 s{sT2}, 2
        s_cselect_b32 s{sT1}, s{sPFO}, s{sT1}
        s_cselect_b32 s{sT0}, {n1}, s{sT0}
        v_add_u32 v{vT+6}, s{sT1}, v1
        v_lshlrev_b32 v{vT+6}, 7, v{vT+6}
        s_cmp_eq_u32 s{sT2}, 3
        s_cselect_b32 s{sT0}, 0, s{sT0}
        s_cmp_lg_u32 s{sT2}, 0
        s_cbranch_scc1 {l1}
        s_mov_b32 s{sT0}, {8*xn}
        s_lshl_b32 s{sT1}, s2, 13
        s_add_u32 s{sT1}, s{sT1}, {128*xa}
        v_and_b32 v{vT+6}, 7, v1
        v_lshlrev_b32 v{vT+6}, 10, v{vT+6}
        v_lshrrev_b32 v{vT+7}, 3, v1
        v_lshl_add_u32 v{vT+6}, v{vT+7}, 7, v{vT+6}
        v_add_u32 v{vT+6}, s{sT1}, v{vT+6}
        {l1}:
        v_cmp_gt_u32 vcc, s{sT0}, v1
        v_mov_b32 v{vT+7}, 0x80000000
        v_cndmask_b32 v{vT+6}, v{vT+7}, v{vT+6}, vcc
        """)
    def touch_go(self):
        k = self.k; vT = self.vT
        k(f"""
        s_mov_b32 s{sPF+3}, 0x20000
        s_mov_b32 s{sPF+2}, {512*3072}
        s_cmp_eq_u32 s{sT2}, 2
        s_cselect_b32 s{sPF}, s{pW1}, s{pWQ}
        s_cselect_b32 s{sPF+1}, s{pW1+1}, s{pWQ+1}
        s_cselect_b32 s{sPF+2}, {512*2752}, s{sPF+2}
        s_cmp_eq_u32 s{sT2}, 0
        s_cselect_b32 s{sPF}, s{pX}, s{sPF}
        s_cselect_b32 s{sPF+1}, s{pX+1}, s{sPF+1}
        s_cselect_b32 s{sPF+2}, {2048*1024}, s{sPF+2}
        buffer_load_dword v{vT+7}, v{vT+6}, {srd(sPF)}, 0 offen
        """)
        self.vm.append("X")

    def st_setup(self, w, chunk):
        k = self.k
        l0, l1 = k.label("SS"), k.label("SS")
        k(f"""
        s_cmp_lt_u32 s{w}, 2
        s_cbranch_scc1 {l0}
        s_mul_i32 s{sT0}, s2, 6
        s_mul_i32 s{sT1}, s2, 43
        s_lshr_b32 s{sT1}, s{sT1}, 3
        s_mov_b32 s{sSS}, {64*3072}
        s_cmp_eq_u32 s{w}, 3
        s_cselect_b32 s{sT0}, s{sT1}, s{sT0}
        s_cselect_b32 s{sSS}, {64*2752}, s{sSS}
        s_cselect_b32 s{sSB}, s{pW1}, s{pWQ}
        s_cselect_b32 s{sSB+1}, s{pW1+1}, s{pWQ+1}
        s_lshl_b32 s{sT0}, s{sT0}, 7
        """)
        for i in range(6): k(f"s_add_u32 s{sSO+i}, s{sT0}, {128*i+60}")
        k(f"""
        s_branch {l1}
        {l0}:
        s_lshl1_add_u32 s{sT0}, s2, s{w}
        s_lshl_b32 s{sT0}, s{sT0}, 12
        s_mov_b32 s{sSS}, 128
        s_mov_b32 s{sSB}, s{pX}
        s_mov_b32 s{sSB+1}, s{pX+1}
        """)
        for i in range(6): k(f"s_add_u32 s{sSO+i}, s{sT0}, {1024*min(i,3)+60}")
        k(f"""
        {l1}:
        s_mul_i32 s{sT0}, s{sSS}, {chunk}
        s_add_u32 s{sSB}, s{sSB}, s{sT0}
        s_addc_u32 s{sSB+1}, s{sSB+1}, 0
        """)
    def st_unit(self, w):
        k = self.k; c = self.c
        u = c.st_first + self.st_next; self.st_next += 1
        n = 6
        if u == 8:
            k(f"s_lshl_b32 s{sT0}, s{sSS}, 3\ns_sub_u32 s{sSB}, s{sSB}, s{sT0}\ns_subb_u32 s{sSB+1}, s{sSB+1}, 0")
        elif u == 9:
            k(f"""
            s_mul_i32 s{sT0}, s{w}, 11
            s_min_u32 s{sT0}, s{sT0}, 31
            s_mul_i32 s{sT1}, s2, 43
            s_add_u32 s{sT0}, s{sT0}, s{sT1}
            s_lshl_b32 s{sT0}, s{sT0}, 7
            s_add_u32 s{sSB}, s{pW2}, s{sT0}
            s_addc_u32 s{sSB+1}, s{pW2+1}, 0
            s_mov_b32 s{sSS}, 768
            """)
        elif u == 11:
            k(f"""
            s_lshl2_add_u32 s{sT0}, s2, s{w}
            s_lshl_b32 s{sT0}, s{sT0}, 9
            s_add_u32 s{sSB}, s{pWO}, s{sT0}
            s_addc_u32 s{sSB+1}, s{pWO+1}, 0
            """)
            n = 4
        elif u > 11: return
        for i in range(n):
            k(f"s_load_dwordx2 s[{sSD}:{sSD+1}], s[{sSB}:{sSB+1}], " + (f"s{sSO+i}" if u < 9 else f"{128*i+60}"))
        k(f"s_add_u32 s{sSB}, s{sSB}, s{sSS}\ns_addc_u32 s{sSB+1}, s{sSB+1}, 0")

    def flag_load(self, g):
        self.k(f"s_load_dwordx8 s[{sFG[g]}:{sFG[g]+7}], s[{sFB0}:{sFB1}], {32*g} glc")
    def flag_need(self, s):
        k = self.k
        if s == "gate":
            g = 1; k(f"s_mov_b32 s{sIDX}, 14")
        elif s < 8:
            g = 0; k(f"s_xor_b32 s{sIDX}, s{sROT2}, {s}")
        else:
            g = 1 if s < 11 else 2
            k(f"s_add_u32 s{sIDX}, s{sW01}, {8 + 2*(s-8) if s < 11 else 16 + 2*(s-11)}")
        l0, l1, l2 = k.label("FW"), k.label("FD"), k.label("FE")
        k(f"""
        s_bitcmp1_b32 s{sRDY}, s{sIDX}
        s_cbranch_scc1 {l1}
        {l0}:
        s_waitcnt lgkmcnt(0)
        s_mov_b32 s{sT0}, 0
        """)
        for i in range(7, -1, -1):
            k(f"s_cmp_eq_u32 s{sFG[g]+i}, s{sTAG}\ns_addc_u32 s{sT0}, s{sT0}, s{sT0}")
        k(f"s_cmp_eq_u32 s{sT0}, 0xff\ns_cbranch_scc1 {l2}")
        self.flag_load(g)
        k(f"""
        {l2}:
        s_lshl_b32 s{sT0}, s{sT0}, {8*g}
        s_or_b32 s{sRDY}, s{sRDY}, s{sT0}
        s_bitcmp1_b32 s{sRDY}, s{sIDX}
        s_cbranch_scc1 {l1}
        s_sub_u32 s{sBUD}, s{sBUD}, 1
        s_cbranch_scc0 {l0}
        s_mov_b32 s{sBUD}, 0
        {l1}:
        """)

    def kv_flag_addr(self):
        self.k(f"""
        s_lshl2_add_u32 s{sFLG}, s{sJJ}, s{sT2}
        s_lshl4_add_u32 s{sFLG}, s{sFLG}, s{sRB}
        s_lshl_b32 s{sFLG}, s{sFLG}, 7
        s_add_u32 s{sFLG}, s{sFLG}, {WS_FLAGK}
        """)
    def kv_zero_wait(self):
        k = self.k
        l0, l1 = k.label("ZW"), k.label("ZD")
        self.kv_flag_addr()
        k(f"""
        s_add_u32 s{sT1}, s{sFLG}, 64
        {l0}:
        s_load_dword s{sT0}, s[{pWS}:{pWS+1}], s{sT1} glc
        s_waitcnt lgkmcnt(0)
        s_cmp_eq_u32 s{sT0}, s{sTAGK}
        s_cbranch_scc1 {l1}
        s_sub_u32 s{sBUD}, s{sBUD}, 1
        s_cbranch_scc0 {l0}
        s_mov_b32 s{sBUD}, 0
        {l1}:
        """)
    def kv_flag_load(self):
        k = self.k; c = self.c
        self.kv_flag_addr()
        k(f"s_load_dwordx16 s[{sKF}:{sKF+15}], s[{pWS}:{pWS+1}], s{sFLG} glc")
        if c.kvatom:
            k(f"""
            s_lshl2_add_u32 s{sPFO}, s{sJJ}, s{sT2}
            s_mul_i32 s{sPFO}, s{sPFO}, 1152
            s_add_u32 s{sPFO}, s{sPFO}, {WS_KVA}
            v_lshlrev_b32 v29, 2, v1
            v_and_b32 v30, 60, v29
            """)
        else:
            k(f"""
            s_mul_i32 s{sPFO}, s{sJJ}, {16*KVP_STRIDE}
            s_mul_i32 s{sT1}, s{sT2}, 1152
            s_add_u32 s{sPFO}, s{sPFO}, s{sT1}
            s_add_u32 s{sPFO}, s{sPFO}, {WS_KVP}
            v_lshlrev_b32 v29, 4, v1
            v_lshrrev_b32 v30, 4, v1
            v_mul_u32_u24 v30, {KVP_STRIDE}, v30
            v_and_b32 v31, 15, v1
            v_lshl_add_u32 v30, v31, 2, v30
            """)
        k(f"""
        s_lshr_b32 s{sT0}, s{sT2}, 1
        s_lshl_b32 s{sT0}, s{sT0}, 10
        s_lshl3_add_u32 s{sT0}, s{sW01}, s{sT0}
        s_add_u32 s{sT0}, s{sT0}, {M_KVF}
        v_lshlrev_b32 v100, 4, v1
        v_add_u32 v100, s{sT0}, v100
        s_lshl_b32 s{sT0}, s{sT2}, 5
        s_add_u32 s{sT0}, s{sT0}, {M_ZF}
        v_bfe_u32 v101, v1, 2, 1
        v_lshlrev_b32 v101, 4, v101
        v_bfe_u32 v31, v1, 3, 1
        v_lshl_add_u32 v101, v31, 3, v101
        v_and_b32 v31, 3, v1
        v_lshl_add_u32 v101, v31, 1, v101
        v_add_u32 v101, s{sT0}, v101
        """)
    def kv_gather_issue(self):
        k = self.k; vm = self.vm; c = self.c
        l0, l1 = k.label("KW"), k.label("KD")
        vK = 32
        k(f"""
        {l0}:
        s_waitcnt lgkmcnt(0)
        s_xor_b32 s{sT1}, s{sKF}, s{sTAGK}
        """)
        for i in range(1, 16):
            k(f"s_xor_b32 s{sKF+i}, s{sKF+i}, s{sTAGK}\ns_or_b32 s{sT1}, s{sT1}, s{sKF+i}")
        k(f"""
        s_cbranch_scc0 {l1}
        s_load_dwordx16 s[{sKF}:{sKF+15}], s[{pWS}:{pWS+1}], s{sFLG} glc
        s_sub_u32 s{sBUD}, s{sBUD}, 1
        s_cbranch_scc0 {l0}
        s_mov_b32 s{sBUD}, 0
        s_waitcnt lgkmcnt(0)
        {l1}:
        """)
        self.kv_tok = []
        if c.kvatom:
            for e in range(4):
                k(f"buffer_load_dword v{vK+e}, v29, {srd(sWS)}, s{sPFO} offen offset:{256*e} sc1"); vm.append("X")
            k(f"buffer_load_dword v96, v30, {srd(sWS)}, s{sPFO} offen offset:1024 sc1"); vm.append("X")
            self.kv_tok.append(len(vm) - 1)
            return
        for i in range(16):
            if i % 4 == 0:
                k(f"buffer_load_dword v{96+i//4}, v30, {srd(sWS)}, s{sPFO} offen offset:1024 sc1"); vm.append("X")
            k(f"buffer_load_dwordx4 {vr(vK+4*i)}, v29, {srd(sWS)}, s{sPFO} offen sc1"); vm.append("X")
            self.kv_tok.append(len(vm) - 1)
            if i < 15: k(f"s_add_u32 s{sPFO}, s{sPFO}, {KVP_STRIDE}")
    def kv_gather_finish(self):
        k = self.k; vm = self.vm; c = self.c
        vK = 32
        k("s_setprio 3")
        if c.kvatom:
            k(f"s_waitcnt vmcnt({len(vm) - 1 - self.kv_tok[0]})")
        else:
            for i in range(1, 16):
                if i % 2 == 1: k(f"s_waitcnt vmcnt({len(vm) - 1 - self.kv_tok[min(i+1, 15)]})")
                for e in (0, 2): k(f"v_pk_add_f32 v[{vK+e}:{vK+e+1}], v[{vK+e}:{vK+e+1}], v[{vK+4*i+e}:{vK+4*i+e+1}]")
            k(f"""
            v_pk_add_f32 v[96:97], v[96:97], v[98:99]
            v_add_f32 v96, v96, v97
            v_mov_b32 v97, v96
            v_permlane16_swap_b32 v96, v97
            v_add_f32 v96, v96, v97
            v_mov_b32 v97, v96
            v_permlane32_swap_b32 v96, v97
            v_add_f32 v96, v96, v97
            """)
        k(f"""
        v_cvt_pk_bf16_f32 v{vK}, v{vK}, v{vK+1}
        v_cvt_pk_bf16_f32 v{vK+1}, v{vK+2}, v{vK+3}
        v_cvt_pk_bf16_f32 v96, v96, v96
        ds_write_b64 v100, v[{vK}:{vK+1}]
        ds_write_b16 v101, v96
        s_setprio 0
        s_waitcnt lgkmcnt(0)
        """)

    def consumer_common(self):
        k = self.k; c = self.c
        k("L_consumer:")
        if c.ctouch:
            l = k.label("CT")
            k(f"""
            s_cmp_lg_u32 s{sWAVE}, 0
            s_cbranch_scc1 {l}
            s_getpc_b64 s[4:5]
            L_pc:
            s_sub_u32 s4, s4, L_pc-{KN}_kernel
            s_subb_u32 s5, s5, 0
            v_and_b32 v2, 15, v1
            s_lshl_b32 s{sT0}, s{sT1}, 4
            v_add_u32 v2, s{sT0}, v2
            v_lshlrev_b32 v2, 7, v2
            v_min_u32 v2, L_end-{KN}_kernel, v2
            global_load_dword v12, v2, s[4:5]
            {l}:
            """)
        if c.prio: k("s_setprio 2")
        k(f"""
        ; x read addresses v2..v5 : wave*4096 + t*128 + ((2ks+kh) ^ ((t>>1)&7))*16
        v_and_b32 v10, 31, v1                  ; t
        v_lshrrev_b32 v13, 5, v1               ; kh
        v_bfe_u32 v2, v1, 1, 3
        v_xor_b32 v2, v2, v13
        v_lshlrev_b32 v2, 4, v2
        v_lshl_add_u32 v2, v10, 7, v2
        s_lshl_b32 s{sT0}, s{sWAVE}, 12
        v_add_u32 v2, s{sT0}, v2
        v_xor_b32 v3, 32, v2
        v_xor_b32 v4, 64, v2
        v_xor_b32 v5, 96, v2
        v_bfe_u32 v14, v1, 2, 2                ; r
        v_and_b32 v11, 3, v1
        v_lshlrev_b32 v11, 3, v11
        v_bfe_u32 v15, v1, 4, 1
        v_lshl_add_u32 v11, v15, 5, v11
        v_mul_u32_u24 v15, 320, v14            ; r*256 + r*64
        v_add_u32 v11, v11, v15
        v_lshl_add_u32 v6, v13, 11, v11
        v_xor_b32 v7, 64, v6
        v_xor_b32 v8, 128, v6
        v_xor_b32 v9, 192, v6
        s_and_b32 s{sT0}, s{sWAVE}, 1
        s_lshl_b32 s{sT0}, s{sT0}, 6
        v_lshl_add_u32 v11, v13, 10, v11
        v_xor_b32 v11, s{sT0}, v11
        s_lshl2_add_u32 s{sT0}, s{sRB}, s{sWAVE}     ; tg
        s_lshl_b32 s{sFLG}, s{sT0}, 10
        s_lshl2_add_u32 s{sFLG}, s{sJJ}, s{sFLG}
        s_add_u32 s{sFLG}, s{sFLG}, {WS_FLAGA}
        s_lshl_b32 s{sIDX}, s{sT0}, 7                ; tg*128
        s_mul_i32 s{sT0}, s{sT0}, {A2_TG}
        s_add_u32 s{sT0}, s{sT0}, {WS_A2}
        v_lshlrev_b32 v10, 4, v1
        v_add_u32 v10, s{sT0}, v10
        s_mov_b32 s{sMASK16}, 0xffff0000
        s_mov_b32 s{sMASK16+1}, 0xffff0000
        s_waitcnt lgkmcnt(0)
        """)
        self.epoch_load()
        if c.stamps: k(f"v_mov_b32 v0, 0\nv_writelane_b32 v0, s{sST}, 0")
        self.mk_srd(sWS, pWS, WS_USED)
        self.mk_srd(sOUT, pOUT, 2048*1024)
        k(f"s_mov_b32 s{sC0}, 0x3fb8aa3b\ns_mov_b32 s{sC0+1}, 0x3fb8aa3b\ns_mov_b32 s{sC1}, 0x358637bd")
        if c.st_cons:
            self.st_setup(sWAVE, c.st_first)
            self.st_next = 0
            for _ in range(c.st_cons): self.st_unit(sWAVE)
        lz = k.label("ZI")
        if c.kvatom:
            k(f"""
            s_lshl4_add_u32 s{sT0}, s{sROLE}, s{sRB}
            s_cmp_lg_u32 s{sT0}, s{sJJ}
            s_cbranch_scc1 {lz}
            s_lshl2_add_u32 s{sT2}, s{sJJ}, s{sWAVE}
            s_mul_i32 s{sT0}, s{sT2}, 1152
            s_add_u32 s{sT0}, s{sT0}, {WS_KVA}
            v_mov_b32 v16, 0
            v_mov_b32 v17, 0
            v_mov_b32 v18, 0
            v_mov_b32 v19, 0
            v_lshlrev_b32 v14, 4, v1
            buffer_store_dwordx4 v[16:19], v14, {srd(sWS)}, s{sT0} offen sc1
            buffer_store_dwordx4 v[16:19], v14, {srd(sWS)}, s{sT0} offen offset:128 sc1
            {lz}:
            """)
        self.epoch_tag()
        k("s_waitcnt vmcnt(0)")
        if c.kvatom:
            lz2 = k.label("ZI")
            k(f"""
            s_lshl4_add_u32 s{sT0}, s{sROLE}, s{sRB}
            s_cmp_lg_u32 s{sT0}, s{sJJ}
            s_cbranch_scc1 {lz2}
            s_lshl2_add_u32 s{sT2}, s{sJJ}, s{sWAVE}
            s_lshl_b32 s{sT0}, s{sT2}, 11
            s_add_u32 s{sT0}, s{sT0}, {WS_FLAGK + 64}
            v_mov_b32 v16, s{sTAGK}
            v_lshlrev_b32 v14, 7, v1
            s_mov_b64 exec, 0xffff
            buffer_store_dword v16, v14, {srd(sWS)}, s{sT0} offen sc1
            s_mov_b64 exec, -1
            {lz2}:
            """)
        k(f"""
        s_cmp_eq_u32 s{sROLE}, 0
        s_cbranch_scc1 L_cons0
        s_branch L_cons1
        """)

    def ev(self):
        if not self.c.stamps: return
        r = 80 + 2*self.nev; assert r < 96; self.nev += 1
        self.k(f"s_memrealtime s[{r}:{r+1}]")

    def publish(self, soff, imm=0, tag=sTAG, vt=4):
        self.ev()
        self.k(f"""
        v_mov_b32 v5, s{tag}
        v_lshlrev_b32 v{vt}, 7, v1
        s_waitcnt vmcnt(0)
        s_mov_b64 exec, {0xff if tag == sTAG else 0xffff}
        buffer_store_dword v5, v{vt}, {srd(sWS)}, s{soff} offen offset:{imm} sc1
        s_mov_b64 exec, -1
        """)
        self.ev()

    def phi(self, src, dst, t):
        k = self.k
        for r in range(0, 16, 4):
            a = src + r
            k(f"""
            v_pk_mul_f32 v[{t}:{t+1}], v[{a}:{a+1}], s[{sC0}:{sC0+1}]
            v_pk_mul_f32 v[{t+2}:{t+3}], v[{a+2}:{a+3}], s[{sC0}:{sC0+1}]
            v_exp_f32_e64 v{t}, v{t} clamp
            v_max_f32 v{a}, s{sC1}, v{a}
            v_exp_f32_e64 v{t+1}, v{t+1} clamp
            v_max_f32 v{a+1}, s{sC1}, v{a+1}
            v_exp_f32_e64 v{t+2}, v{t+2} clamp
            v_max_f32 v{a+2}, s{sC1}, v{a+2}
            v_exp_f32_e64 v{t+3}, v{t+3} clamp
            v_max_f32 v{a+3}, s{sC1}, v{a+3}
            v_pk_add_f32 v[{t}:{t+1}], v[{t}:{t+1}], v[{a}:{a+1}]
            v_pk_add_f32 v[{t+2}:{t+3}], v[{t+2}:{t+3}], v[{a+2}:{a+3}]
            v_cvt_pk_bf16_f32 v{dst+r//2}, v{t}, v{t+1}
            v_cvt_pk_bf16_f32 v{dst+r//2+1}, v{t+2}, v{t+3}
            """)

    def relu_store(self, src, soff, off):
        out = []
        for f in range(2):
            b = src + 8*f
            for r in range(4): out.append(f"v_cvt_pk_bf16_f32 v{b+r}, v{b+2*r}, v{b+2*r+1}")
            for r in range(4): out.append(f"v_pk_max_i16 v{b+r}, v{b+r}, 0")
            out.append(f"buffer_store_dwordx4 {vr(b)}, v10, {srd(sWS)}, s{soff} offen offset:{off+1024*f} sc1")
        return out

    def consumer(self, role):
        k = self.k; c = self.c
        bars, sched, slot = self.S[role]
        ds = DS(k); self.nev = 0
        vACC, vACB, vXF, vWB = 64, 32, 128, 12
        k(f".p2align 6\nL_cons{role}:")
        nbar = [0]
        def barrier(name):
            assert bars[nbar[0]] == name, (bars[nbar[0]], name)
            k("s_barrier"); nbar[0] += 1
        M = []
        for t in range(8):
            for ks in range(4):
                for ct in range(4): M.append(dict(t=t, ks=ks, q=ct, xf=4*t+ks, acc=vACC+16*ct, first=(t == 0 and ks == 0), tr=(role == 1)))
        for u in range(4):
            for hf in range(2):
                for ks in range(4):
                    for ct in range(2): M.append(dict(t=8+u, ks=ks, q=2*hf+ct, xf=(2*u+hf)*4+ks, acc=vACB+16*ct, first=(u == 0 and hf == 0 and ks == 0), tr=True))
        xtok = {}; seen = set()
        def reads(m):
            e = M[m]; t = e["t"]
            if t not in seen:
                seen.add(t)
                if t in bars: barrier(t)
            if t < 8 and e["ks"] == 0:
                ks = e["q"]
                xtok[4*t+ks] = ds.read128(vXF + 4*(4*t+ks), 2+ks, slot[("A", t)]*SLOT)
            b = vWB + 4*(m % c.NB)
            a = slot[("W", t)]*SLOT + e["ks"]*4096
            ds.tr(b, 6+e["q"], a); e["tok"] = ds.tr(b+2, 6+e["q"], a + 1024)
        def mfma(m):
            e = M[m]
            ds.wait(max(e["tok"], xtok[e["xf"]]))
            b = vWB + 4*(m % c.NB); x = vXF + 4*e["xf"]
            A, B = (b, x) if e["tr"] else (x, b)
            k(f"v_mfma_f32_32x32x16_bf16 {vr(e['acc'],16)}, {vr(A)}, {vr(B)}, {'0' if e['first'] else vr(e['acc'],16)}")
        for m in range(c.L): reads(m)
        skipB = k.label("SKB"); joinB = k.label("JB")
        fillq = []
        for m in range(len(M)):
            if m == 128:
                if role == 1:
                    k(f"s_lshl_b32 s{sT2}, s{sJJ}, 13\ns_add_u32 s{sT1}, s{sT2}, 4096")
                    k(f"s_cmp_ge_u32 s{sJJ}, 6\ns_cbranch_scc1 {skipB}")
                    saved = (ds.n, ds.done, dict(ds.base), nbar[0], self.nev)
                    epiA = []
                    for ct in range(4): epiA += self.relu_store(vACC+16*ct, sT2 if ct < 2 else sT1, (ct & 1)*2048)
                    if c.fill: fillq = list(epiA)
                    else: k("\n".join(epiA))
                else:
                    self.epiA_qkv(ds, slot, barrier)
            if m + c.L < len(M): reads(m + c.L)
            mfma(m)
            if m >= 128:
                for _ in range(c.fill):
                    if fillq: k(fillq.pop(0))
            if role == 1 and m == 128 + c.pub_hA:
                assert not fillq
                self.publish(sFLG)
            if role == 0 and m == 128 + c.pub_kv:
                k(f"""
                s_lshl2_add_u32 s{sT0}, s{sJJ}, s{sWAVE}
                s_lshl_b32 s{sT0}, s{sT0}, 11
                s_lshl2_add_u32 s{sT0}, s{sRB}, s{sT0}
                s_add_u32 s{sT0}, s{sT0}, {WS_FLAGK}
                """)
                self.publish(sT0, 0, sTAGK)
        if role == 1:
            k(f"s_lshl_b32 s{sT2}, s{sJJ}, 12\ns_add_u32 s{sT2}, s{sT2}, {64*1024}")
            for ct in range(2): k("\n".join(self.relu_store(vACB+16*ct, sT2, ct*2048)))
            k(f"s_branch {joinB}")
            endstate = (nbar[0], self.nev)
            k(f"{skipB}:\ns_nop 9")
            ds.n, ds.done, ds.base, nbar[0], self.nev = saved
            k("\n".join(epiA))
            ds.waitall()
            noG = k.label("NG")
            k(f"s_cmp_lg_u32 s{sJJ}, 6\ns_cbranch_scc1 {noG}")
            k(f"v_lshrrev_b32 v2, 5, v1\nv_lshlrev_b32 v2, 4, v2\nv_add_u32 v2, {M_GW}, v2")
            toks = {}
            for f in range(32 + 4):
                if f < 32: toks[f] = ds.op(f"ds_read_b128 {vr(vWB+4*(f%5))}, v2 offset:{32*f}")
                if f >= 4:
                    g = f - 4
                    ds.wait(toks[g])
                    k(f"v_mfma_f32_32x32x16_bf16 {vr(vACB,16)}, {vr(vWB+4*(g%5))}, {vr(vXF+4*g)}, {'0' if g == 0 else vr(vACB,16)}")
            k(f"{noG}:")
            self.publish(sFLG)
            noG2 = k.label("NG")
            k(f"""
            s_cmp_lg_u32 s{sJJ}, 6
            s_cbranch_scc1 {noG2}
            s_nop 7
            v_mul_f32 v2, 0xbfb8aa3b, v{vACB}
            v_exp_f32 v2, v2
            v_add_f32 v2, 1.0, v2
            v_rcp_f32 v2, v2
            v_and_b32 v3, 31, v1
            v_lshlrev_b32 v3, 2, v3
            s_add_u32 s{sT0}, s{sIDX}, {WS_G}
            buffer_store_dword v2, v3, {srd(sWS)}, s{sT0} offen sc1
            {noG2}:
            """)
            while bars[nbar[0]] != 12: barrier(bars[nbar[0]])
            assert (nbar[0], self.nev) == endstate
            k(f"{joinB}:\ns_nop 1")
            ds.n = ds.done = 0
        elif c.phiq_at < 12:
            for ct in range(2): self.phi(vACB+16*ct, vACB+8*ct, 6)
        k(f"""
        s_lshr_b32 s{sT0}, s{sWAVE}, 1
        s_lshl_b32 s{sT0}, s{sT0}, 13
        v_lshlrev_b32 v2, 4, v1
        v_add_u32 v2, s{sT0}, v2
        v_mov_b32 v3, v11
        v_xor_b32 v4, 128, v11
        """)
        ds.base = {}
        vB, vA = 96, 112
        fA, fW = 128, 160
        tok = {}
        def rd2(t, kf):
            a = slot[("A", t)]*SLOT + kf*1024
            w = slot[("W", t)]*SLOT + (kf & 3)*4096
            ds.read128(fA+4*kf, 2, a)
            ds.tr(fW+4*kf, 3+(kf >> 2), w); tok[(t, kf)] = ds.tr(fW+4*kf+2, 3+(kf >> 2), w + 2048)
        def mf2(t, kf):
            ds.wait(tok[(t, kf)])
            acc = vB if t < 23 else vA
            first = kf == 0 and t in (12, 23)
            k(f"v_mfma_f32_32x32x16_bf16 {vr(acc,16)}, {vr(fW+4*kf)}, {vr(fA+4*kf)}, {'0' if first else vr(acc,16)}")
        def extras(t):
            if role == 1 and t == c.pub_hB: self.publish(sFLG, 32, sTAG, 6)
            if role == 0 and t == c.phiq_at:
                for ct in range(2): self.phi(vACB+16*ct, vACB+8*ct, 6)
            if role == 0 and t == max(self.tau(bars[bars.index(c.G) + (2 if c.Gsplit else 1)]), 12): self.o_compute(ds)
            if role == 0 and t == c.pub_o: self.publish(sFLG, 64, sTAG, 6)
            if t == 23:
                k(f"""
                s_lshr_b32 s{sT1}, s{sWAVE}, 1
                s_lshl1_add_u32 s{sT0}, s{sTB}, s{sT1}
                s_lshl_b32 s{sT1}, s{sT0}, 7
                s_add_u32 s{sT1}, s{sT1}, {WS_G}
                v_and_b32 v5, 31, v1
                v_lshlrev_b32 v6, 2, v5
                buffer_load_dword v8, v6, {srd(sWS)}, s{sT1} offen sc1
                s_lshl_b32 s{sT0}, s{sT0}, 15
                s_lshl_b32 s{sT1}, s{sCB}, 7
                s_add_u32 s{sT0}, s{sT0}, s{sT1}
                s_and_b32 s{sT1}, s{sWAVE}, 1
                s_lshl_b32 s{sT1}, s{sT1}, 6
                s_add_u32 s{sT0}, s{sT0}, s{sT1}
                v_lshrrev_b32 v6, 5, v1
                v_lshlrev_b32 v6, 4, v6
                v_lshl_add_u32 v6, v5, 10, v6
                v_add_u32 v6, s{sT0}, v6
                """)
            if t == 25:
                k("s_waitcnt vmcnt(0)\nv_sub_f32 v7, 1.0, v8")
                for r in range(16): k(f"v_mul_f32 v{vB+r}, v7, v{vB+r}")
        ds.waitall()
        barrier(12)
        for kf in range(4): rd2(12, kf)
        extras(12)
        for t in range(12, 27):
            for kf in range(8):
                if kf == 5 and t < 26:
                    ds.waitall()
                    barrier(t+1)
                mf2(t, kf)
                if kf < 4: rd2(t, kf+4)
                elif kf >= 5 and t < 26:
                    rd2(t+1, kf-5)
                    if kf == 7:
                        rd2(t+1, 3)
                        extras(t+1)
        assert nbar[0] == len(bars)
        for p in range(2):
            for r in range(8*p, 8*p+8, 2):
                k(f"v_pk_fma_f32 v[{vA+r}:{vA+r+1}], v[{vA+r}:{vA+r+1}], v[8:9], v[{vB+r}:{vB+r+1}] op_sel_hi:[1,0,1]")
            for r in range(4*p, 4*p+4):
                k(f"v_cvt_pk_bf16_f32 v{64+r}, v{vA+2*r}, v{vA+2*r+1}")
            k(f"v_permlane32_swap_b32 v{64+4*p}, v{64+4*p+2}\nv_permlane32_swap_b32 v{64+4*p+1}, v{64+4*p+3}")
            k(f"buffer_store_dwordx4 {vr(64+4*p)}, v6, {srd(sOUT)}, 0 offen offset:{32*p} {c.outaux}")
        if c.stamps:
            k(f"s_waitcnt vmcnt(0)\ns_memrealtime s[{sST}:{sST+1}]\ns_waitcnt lgkmcnt(0)\nv_writelane_b32 v0, s{sST}, 40")
            for e in range(self.nev): k(f"v_writelane_b32 v0, s{80+2*e}, {41+e}")
            self.stamp_addr(2)
            k(f"global_store_dword v2, v0, s[{pWS}:{pWS+1}]")
        k("s_endpgm")

    def epiA_qkv(self, ds, slot, barrier):
        k = self.k
        def mf(D, A, B, first): k(f"v_mfma_f32_32x32x16_bf16 {vr(D,16)}, {vr(A)}, {vr(B)}, {'0' if first else vr(D,16)}")
        self.phi(64, 64, 2)
        for ct in (2, 3):
            for r in range(8): k(f"v_cvt_pk_bf16_f32 v{32+8*ct+r}, v{64+16*ct+2*r}, v{64+16*ct+2*r+1}")
        k(f"""
        v_and_b32 v2, 4, v1
        v_cmp_eq_u32 vcc, 0, v2
        v_mov_b32 v2, 0x3f803f80
        """)
        mf(96, 64, 48, True); mf(96, 68, 52, False)
        k("v_cndmask_b32 v72, 0, v2, vcc\nv_xor_b32 v76, v72, v2")
        for i in (1, 2, 3): k(f"v_mov_b32 v{72+i}, v72\nv_mov_b32 v{76+i}, v76")
        mf(32, 72, 64, True); mf(32, 72, 68, False)
        self.phi(80, 80, 2)
        mf(112, 80, 56, True); mf(112, 84, 60, False)
        mf(32, 76, 80, False); mf(32, 76, 84, False)
        S = slot["S"]*SLOT
        k(f"""
        s_lshl_b32 s{sT0}, s{sWAVE}, 12
        s_add_u32 s{sT0}, s{sT0}, {S}
        v_lshlrev_b32 v2, 4, v1
        v_add_u32 v3, s{sT0}, v2
        s_lshl_b32 s{sT0}, s{sWAVE}, 8
        s_add_u32 s{sT0}, s{sT0}, {M_ZST}
        v_lshlrev_b32 v4, 2, v1
        v_add_u32 v5, s{sT0}, v4
        """)
        for T in range(2):
            for q in range(2):
                for r in range(4*q, 4*q+4):
                    k(f"v_cndmask_b32 v{96+16*T+r}, v{96+16*T+r}, v{96+16*T+8+r}, s[{sMASK16}:{sMASK16+1}]")
                ds.op(f"ds_write_b128 v3, {vr(96+16*T+4*q)} offset:{(2*T+q)*1024}")
        ds.op(f"ds_write_b32 v5, v32")
        k(f"""
        s_lshl_b32 s{sT0}, s{sWAVE}, 10
        s_add_u32 s{sT1}, s{sT0}, {S}
        v_add_u32 v3, s{sT1}, v2
        v_add_u32 v5, {M_ZST}, v4
        """)
        if self.c.kvatom:
            k(f"""
            s_lshl2_add_u32 s{sT0}, s{sJJ}, s{sWAVE}
            s_mul_i32 s{sT0}, s{sT0}, 1152
            s_add_u32 s{sT0}, s{sT0}, {WS_KVA}
            v_mov_b32 v2, v4
            """)
        else:
            k(f"""
            s_lshl4_add_u32 s{sT0}, s{sJJ}, s{sRB}
            s_mul_i32 s{sT0}, s{sT0}, {KVP_STRIDE}
            s_add_u32 s{sT0}, s{sT0}, {WS_KVP}
            s_mul_i32 s{sT1}, s{sWAVE}, 1152
            s_add_u32 s{sT0}, s{sT0}, s{sT1}
            """)
        k(f"""
        v_lshrrev_b32 v88, 4, v1
        v_cmp_eq_u32 vcc, s{sWAVE}, v88
        v_and_b32 v4, 60, v4
        v_mov_b32 v88, 0x80000000
        v_cndmask_b32 v4, v88, v4, vcc
        """)
        ds.waitall()
        barrier("8x")
        for w in range(4): ds.op(f"ds_read_b128 {vr(96+4*w)}, v3 offset:{w*4096}")
        t1 = ds.n
        for w in range(4): ds.op(f"ds_read_b32 v{112+w}, v5 offset:{w*256}")
        ds.wait(t1)
        for e in (0, 2):
            k(f"v_pk_add_f32 v[{96+e}:{97+e}], v[{96+e}:{97+e}], v[{100+e}:{101+e}]\nv_pk_add_f32 v[{104+e}:{105+e}], v[{104+e}:{105+e}], v[{108+e}:{109+e}]")
        for e in (0, 2): k(f"v_pk_add_f32 v[{96+e}:{97+e}], v[{96+e}:{97+e}], v[{104+e}:{105+e}]")
        if self.c.kvatom:
            for e in range(4): k(f"buffer_atomic_add_f32 v{96+e}, v2, {srd(sWS)}, s{sT0} offen offset:{256*e}")
        else:
            k(f"buffer_store_dwordx4 {vr(96)}, v2, {srd(sWS)}, s{sT0} offen sc1")
        ds.waitall()
        barrier("8y")
        k("v_pk_add_f32 v[112:113], v[112:113], v[114:115]\nv_add_f32 v112, v112, v113")
        if self.c.kvatom: k(f"buffer_atomic_add_f32 v112, v4, {srd(sWS)}, s{sT0} offen offset:1024")
        else: k(f"buffer_store_dword v112, v4, {srd(sWS)}, s{sT0} offen offset:1024 sc1")

    def o_compute(self, ds):
        k = self.k
        self.ev()
        k(f"""
        v_lshlrev_b32 v6, 4, v1
        v_add_u32 v6, {M_KVF}, v6
        v_lshrrev_b32 v7, 5, v1
        v_lshlrev_b32 v7, 4, v7
        v_add_u32 v7, {M_ZF}, v7
        """)
        toks = []
        for T in range(2):
            for f in range(2):
                k(f"v_add_u32 v8, {1024*T}, v6\nv_add_u32 v9, {64*T+32*f}, v7")
                if f == 0: k(f"v_cndmask_b32 v8, v8, v9, s[{sMASK16}:{sMASK16+1}]")
                else: k(f"v_cndmask_b32 v8, v9, v8, s[{sMASK16}:{sMASK16+1}]")
                toks.append(ds.op(f"ds_read_b128 {vr(12+4*(2*T+f))}, v8"))
        k(f"s_lshl_b32 s{sT0}, s{sJJ}, 12\ns_add_u32 s{sT0}, s{sT0}, {88*1024}")
        D = [64, 80, 192, 208]
        for h in range(4):
            ds.wait(toks[h])
            k(f"v_mfma_f32_32x32x16_bf16 {vr(D[h],16)}, {vr(12+4*h)}, {vr(32+4*h)}, 0")
        for h in range(4):
            f = h & 1
            num = D[h] + 8*f; den = D[h] + 8*(1-f)
            k(f"v_add_f32 v{den}, s{sC1}, v{den}\nv_rcp_f32 v{den}, v{den}")
            for r in range(0, 8, 2): k(f"v_pk_mul_f32 v[{num+r}:{num+r+1}], v[{num+r}:{num+r+1}], v[{den}:{den+1}] op_sel_hi:[1,0]")
            for r in range(4): k(f"v_cvt_pk_bf16_f32 v{num+r}, v{num+2*r}, v{num+2*r+1}")
            k(f"buffer_store_dwordx4 {vr(num)}, v10, {srd(sWS)}, s{sT0} offen offset:{1024*h} sc1")

    def build(self, path):
        k = self.k
        self.prologue()
        self.loader_common()
        k("s_branch L_load0")
        self.consumer_common()
        self.loader(0); self.loader(1)
        self.consumer(0); self.consumer(1)
        k("L_end:\ns_endpgm")
        k.lines, n = hazard.pad(k.lines)
        if self.c.align: k.pre = ".p2align 12\n.fill 832, 4, 0xbf800000\n"
        emit(path, [k])
        return n

def make(path, **kw):
    c = Cfg()
    for a, b in kw.items():
        assert hasattr(c, a), a
        setattr(c, a, b)
    g = Gen(c)
    n = g.build(path)
    return g, n

def show(g):
    for role in (0, 1):
        bars, sched, slot = g.S[role]
        print("role", role, " | ".join(f"{bars[i-1] if i else 's'}:" + ",".join(f"{a}{t}" for a, t in it) for i, it in enumerate(sched)))

if __name__ == "__main__":
    base = dict(firstA2={0: 8.5, 1: 9}, nW2pre=4, cap={(0, 8): 3})
    g, n = make("k4.s", **base); show(g)
    print("nops added", n, "lines", len(g.k.lines))
    make("k4a.s", kvatom=True, **base)
    make("k4s.s", stamps=True, **base)
    make("k4s_a.s", stamps=True, kvatom=True, **base)
    make("k4s_a8.s", stamps=True, kvatom=True, G="8y", Glast=True, pub_o=14, **base)
    make("k4s_nov.s", stamps=True, vt=None, st_first=1, st_cons=3, **base)
    make("k4s_c2.s", stamps=True, st_cons=2, **base)
    make("k4s_rot.s", stamps=True, rot=True, vt=None, st_first=9, st_plan={1: 1, 2: 1, 3: 1}, **base)
```
